```python
import torch

def _softmax(x, axis=-1):
    return torch.softmax(x, dim=axis)

def _gelu(x):
    return torch.nn.functional.gelu(x, approximate='tanh')

def _silu(x):
    return torch.nn.functional.silu(x)

def _sigmoid(x):
    return torch.sigmoid(x)

def _layernorm(x, axis=-1, eps=1e-05):
    m = x.mean(dim=axis, keepdim=True)
    v = x.var(dim=axis, keepdim=True, unbiased=False)
    return (x - m) / torch.sqrt(v + eps)

def _scatter_add(tgt, idx, src, axis=0):
    return tgt.clone().index_add_(axis, idx, src)

def _segment_sum(src, seg, n):
    out = torch.zeros((n,) + src.shape[1:], dtype=src.dtype)
    return out.index_add_(0, seg, src)

def _pad(x, pw):
    flat = tuple((v for pair in reversed(pw) for v in pair))
    return torch.nn.functional.pad(x, flat)
kernel_name = 'adaLN_cond__ssm_conv_h3__mixer_gmlp__prompt'

def setup_inputs():

    _w = lambda a: (lambda t: t.to(torch.bfloat16) if t.is_floating_point() else t)(torch.as_tensor(a))

    def _A_setup():
        B, S, D = (1, 2048, 640)
        ks = 4
        return {'q': _w((lambda *s: torch.randn(*s, dtype=torch.bfloat16) * 0.05)(B, S, D)), 'k': _w((lambda *s: torch.randn(*s, dtype=torch.bfloat16) * 1.6)(B, S, D)), 'v': _w((lambda *s: torch.randn(*s, dtype=torch.bfloat16) * 1.6)(B, S, D)), 'shift_k': _w((lambda *s: torch.randn(*s, dtype=torch.bfloat16) * 1.6)(D, ks) * 0.5), 'ssm_k': _w((lambda *s: torch.randn(*s, dtype=torch.bfloat16) * 1.6)(D, S) * (1.0 / S ** 0.5)), 'ssm_D': _w((lambda *s: torch.randn(*s, dtype=torch.bfloat16) * 1.6)(D))}
    _A_in = _A_setup()

    def _B_setup():
        B, S, D, F = (1, 2048, 640, 1728)
        Fh = F // 2
        return {'x': _w((lambda *s: torch.randn(*s, dtype=torch.bfloat16) * 0.05)(B, S, D)), 'w_in': _w((lambda *s: torch.randn(*s, dtype=torch.bfloat16) * 0.8)(D, 2 * Fh)), 'w_sp': _w(0.01 * (lambda *s: torch.randn(*s, dtype=torch.bfloat16) * 0.8)(S, S)), 'b_sp': _w(1.0 + 0.01 * (lambda *s: torch.randn(*s, dtype=torch.bfloat16) * 0.1)(S)), 'w_out': _w((lambda *s: torch.randn(*s, dtype=torch.bfloat16) * 0.1)(Fh, D))}
    _B_in = _B_setup()
    return {'A_q': _A_in['q'], 'A_k': _A_in['k'], 'A_v': _A_in['v'], 'A_shift_k': _A_in['shift_k'], 'A_ssm_k': _A_in['ssm_k'], 'A_ssm_D': _A_in['ssm_D'], 'B_x': _B_in['x'], 'B_w_in': _B_in['w_in'], 'B_w_sp': _B_in['w_sp'], 'B_b_sp': _B_in['b_sp'], 'B_w_out': _B_in['w_out'], 'c': _w((lambda *s: torch.randn(*s, dtype=torch.bfloat16) * 0.1)(1, 640) * 8.0), 'w_mod': _w((lambda *s: torch.randn(*s, dtype=torch.bfloat16) * 0.1)(640, 6 * 640) * 640 ** (-0.5) * 8.0)}

def reference(A_q, A_k, A_v, A_shift_k, A_ssm_k, A_ssm_D, B_x, B_w_in, B_w_sp, B_b_sp, B_w_out, c, w_mod):

    def _A_ref(q, k, v, shift_k, ssm_k, ssm_D):
        B, S, D = q.shape
        ks = shift_k.shape[-1]
        k_pad = _pad(k, ((0, 0), (ks - 1, 0), (0, 0)))
        k_shift = torch.zeros_like(k)
        for t in range(ks):
            k_shift = k_shift + k_pad[:, t:t + S, :] * shift_k[:, ks - 1 - t][None, None, :]
        kv = k_shift * v
        L = 2 * S
        kv_pad = _pad(kv, ((0, 0), (0, S), (0, 0)))
        kf_pad = _pad(ssm_k, ((0, 0), (0, S)))
        kv_f = (lambda x, axes=(-2, -1): torch.fft.rfft2(x.float(), dim=axes))(kv_pad[:, None, :, :], axes=(1, 2))
        kf_f = (lambda x, axes=(-2, -1): torch.fft.rfft2(x.float(), dim=axes))(kf_pad[:, None, :], axes=(1, 2))
        kf_f = (lambda x, *d: x.permute(*d))(kf_f, 1, 2, 0)
        y_f = kv_f * kf_f[None, :, :, :]
        y = (lambda x, s, axes=(-2, -1): torch.fft.irfft2(x, s=s, dim=axes).to(torch.bfloat16))(y_f, (1, L), axes=(1, 2))[:, 0, :S, :]
        y = y + kv * ssm_D[None, None, :]
        return q * y

    def _B_ref(x, w_in, w_sp, b_sp, w_out):
        B, S, D = x.shape
        F = w_in.shape[-1]
        Fh = F // 2
        z = _gelu(torch.einsum('bsd,df->bsf', x, w_in))
        z1 = z[..., :Fh].clone()
        z2 = _layernorm(z[..., Fh:], axis=-1)
        g = torch.einsum('ts,bsf->btf', w_sp, z2) + b_sp[None, :, None]
        return torch.einsum('bsf,fd->bsd', z1 * g, w_out)
    x = A_q
    mod = (_silu(c) @ w_mod).reshape(c.shape[0], 6, 1, -1)
    sa, ca, ga, sb, cb, gb = (mod[:, 0].clone(), mod[:, 1].clone(), mod[:, 2].clone(), mod[:, 3].clone(), mod[:, 4].clone(), mod[:, 5].clone())
    h = _layernorm(x, axis=-1) * (1 + ca) + sa
    x = x + ga * _A_ref(h, A_k, A_v, A_shift_k, A_ssm_k, A_ssm_D)
    h = _layernorm(x, axis=-1) * (1 + cb) + sb
    x = x + gb * _B_ref(h, B_w_in, B_w_sp, B_b_sp, B_w_out)
    return x
```

```python
import re

TRANS = ("v_exp_f32", "v_log_f32", "v_rcp_f32", "v_rsq_f32", "v_sqrt_f32", "v_sin_f32", "v_cos_f32",
         "v_rcp_iflag_f32")
RMW_VALU = ("v_fmac_f32", "v_dot2c_f32_bf16", "v_writelane_b32", "v_pk_fmac_f16")
SWAP_VALU = ("v_swap_b32", "v_permlane16_swap_b32", "v_permlane32_swap_b32")
NO_DST_SALU = ("s_cmp", "s_cbranch", "s_branch", "s_waitcnt", "s_barrier", "s_nop", "s_setprio", "s_sleep",
               "s_endpgm", "s_bitcmp", "s_setpc", "s_sendmsg", "s_setreg")
MFMA_PASSES = {"v_mfma_f32_16x16x32_bf16": 4, "v_mfma_f32_32x32x16_bf16": 8, "v_mfma_f32_16x16x16_bf16": 4}


def v(n, cnt=1):
    return f"v{n}" if cnt == 1 else f"v[{n}:{n + cnt - 1}]"


def a(n, cnt=1):
    return f"a{n}" if cnt == 1 else f"a[{n}:{n + cnt - 1}]"


def s(n, cnt=1):
    return f"s{n}" if cnt == 1 else f"s[{n}:{n + cnt - 1}]"


_REG1 = re.compile(r"^([vas])(\d+)$")
_REGN = re.compile(r"^([vas])\[(\d+):(\d+)\]$")


def regs_of(tok):
    tok = tok.strip()
    while True:
        if tok.startswith("-"):
            tok = tok[1:]
        elif tok.startswith("abs(") and tok.endswith(")"):
            tok = tok[4:-1]
        elif tok.startswith("|") and tok.endswith("|"):
            tok = tok[1:-1]
        else:
            break
    m = _REG1.match(tok)
    if m:
        return [(m.group(1), int(m.group(2)))]
    m = _REGN.match(tok)
    if m:
        return [(m.group(1), i) for i in range(int(m.group(2)), int(m.group(3)) + 1)]
    if tok in ("vcc", "vcc_lo", "vcc_hi"):
        return [("s", "vcc")]
    if tok in ("exec", "exec_lo", "exec_hi"):
        return [("s", "exec")]
    if tok == "m0":
        return [("s", "m0")]
    return []


def split_ops(rest):
    ops, depth, cur = [], 0, ""
    for ch in rest:
        if ch in "[(":
            depth += 1
        elif ch in "])":
            depth -= 1
        if ch == "," and depth == 0:
            ops.append(cur.strip())
            cur = ""
        else:
            cur += ch
    if cur.strip():
        ops.append(cur.strip())
    mods = ""
    if ops:
        last = ops[-1]
        depth = 0
        for i, ch in enumerate(last):
            if ch in "[(":
                depth += 1
            elif ch in "])":
                depth -= 1
            elif ch == " " and depth == 0:
                ops[-1], mods = last[:i], last[i + 1:]
                break
    return ops, mods


class Ins:
    def __init__(self, text, tok=None, need=None):
        self.text = text
        self.reads, self.writes = set(), set()
        self.cls = None
        self.target = None
        self.srcc = []
        self.srcab = []
        self.dstt = []
        self.store_data = []
        self.passes = 0
        self.lds_dma = False
        self.dpp = self.sdwa = False
        if text is None:
            self.mn, self.cls = "", "pseudo"
        else:
            self._parse(text)
        for t in ([tok] if isinstance(tok, str) else (tok or [])):
            self.writes.add(("t", t))
        for t in ([need] if isinstance(need, str) else (need or [])):
            self.reads.add(("t", t))

    def _parse(self, text):
        parts = text.split(None, 1)
        mn = parts[0]
        rest = parts[1] if len(parts) > 1 else ""
        self.mn = mn
        base = re.sub(r"_(e32|e64|dpp|sdwa)$", "", mn)
        self.base = base
        if mn == "s_waitcnt":
            self.cls = "salu"
            return
        ops, mods = split_ops(rest)
        self.ops, self.mods = ops, mods
        R = [regs_of(o) for o in ops]
        flat = lambda xs: [r for x in xs for r in x]
        if mn.startswith("v_mfma"):
            self.cls = "mfma"
            self.passes = MFMA_PASSES[mn]
            self.dstt = R[0]
            self.srcab = R[1] + R[2]
            self.srcc = R[3]
            self.writes |= set(R[0])
            self.reads |= set(flat(R[1:]))
        elif mn.startswith("v_"):
            self.cls = "valu"
            self.dpp = mn.endswith("_dpp") or "row_" in mods or "quad_perm" in mods or "wave_" in mods
            self.sdwa = mn.endswith("_sdwa")
            if base in SWAP_VALU:
                self.writes |= set(R[0] + R[1])
                self.reads |= set(R[0] + R[1])
            elif base in ("v_add_co_u32", "v_sub_co_u32", "v_addc_co_u32", "v_subb_co_u32", "v_mad_u64_u32"):
                self.writes |= set(R[0] + R[1])
                self.reads |= set(flat(R[2:]))
            elif base == "v_nop":
                pass
            else:
                self.writes |= set(R[0])
                self.reads |= set(flat(R[1:]))
                if base in RMW_VALU or self.dpp or "UNUSED_PRESERVE" in mods:
                    self.reads |= set(R[0])
                if base.startswith("v_cmpx"):
                    self.writes.add(("s", "exec"))
        elif mn.startswith("ds_"):
            self.cls = "ds"
            if mn.startswith(("ds_read", "ds_bpermute", "ds_permute", "ds_swizzle")) or "_rtn" in mn:
                self.writes |= set(R[0])
                self.reads |= set(flat(R[1:]))
            else:
                self.reads |= set(flat(R))
        elif mn.startswith(("buffer_", "global_")):
            self.cls = "vmem"
            ml = mods.split()
            if mn in ("buffer_inv", "buffer_wbl2"):
                pass
            elif "lds" in ml or "_lds_" in mn:
                self.lds_dma = True
                self.reads |= set(flat(R))
                self.reads.add(("s", "m0"))
            elif "_load" in mn:
                self.writes |= set(R[0])
                self.reads |= set(flat(R[1:]))
                if "d16" in mn:
                    self.reads |= set(R[0])
            elif "_atomic" in mn:
                self.reads |= set(flat(R))
                if "sc0" in ml:
                    self.writes |= set(R[0])
            else:
                self.reads |= set(flat(R))
                if mn.endswith(("x3", "x4")):
                    self.store_data = R[0] if mn.startswith("buffer_") else R[1]
        elif mn.startswith(("s_load", "s_buffer_load", "s_memtime", "s_memrealtime")):
            self.cls = "smem"
            self.writes |= set(R[0])
            self.reads |= set(flat(R[1:]))
        elif mn.startswith("s_"):
            self.cls = "salu"
            if mn.startswith(("s_cbranch", "s_branch")):
                self.target = ops[0]
                if "vcc" in mn:
                    self.reads.add(("s", "vcc"))
            elif mn.startswith(NO_DST_SALU):
                self.reads |= set(flat(R))
            else:
                self.writes |= set(R[0])
                self.reads |= set(flat(R[1:]))
                if "saveexec" in mn:
                    self.writes.add(("s", "exec"))
                if mn.startswith(("s_addk", "s_mulk", "s_cmov", "s_bitset")):
                    self.reads |= set(R[0])
        else:
            raise ValueError("unknown instruction: " + text)


class Label:
    def __init__(self, name):
        self.name = name


class Raw:
    def __init__(self, text):
        self.text = text


def _parse_wait(text):
    vm = re.search(r"vmcnt\((\d+)\)", text)
    lg = re.search(r"lgkmcnt\((\d+)\)", text)
    return (int(vm.group(1)) if vm else None, int(lg.group(1)) if lg else None)


class WaitState:
    def __init__(self):
        self.vm, self.lg, self.smem = {}, {}, False

    def copy(self):
        o = WaitState()
        o.vm, o.lg, o.smem = dict(self.vm), dict(self.lg), self.smem
        return o

    def merge(self, other):
        ch = False
        for mine, theirs in ((self.vm, other.vm), (self.lg, other.lg)):
            for k, n in theirs.items():
                if k not in mine or n < mine[k]:
                    mine[k] = n
                    ch = True
        if other.smem and not self.smem:
            self.smem = True
            ch = True
        return ch

    def apply_wait(self, vm, lg):
        if vm is not None:
            self.vm = {k: n for k, n in self.vm.items() if n < vm}
        if lg is not None:
            if lg == 0:
                self.lg, self.smem = {}, False
            elif not self.smem:
                self.lg = {k: n for k, n in self.lg.items() if n < lg}

    def step(self, ins):
        if ins.mn == "s_waitcnt":
            self.apply_wait(*_parse_wait(ins.text))
            return None
        vm = lg = None
        for r in ins.reads | ins.writes:
            only_w = r not in ins.reads
            if r in self.vm and not (only_w and ins.cls == "vmem"):
                vm = self.vm[r] if vm is None else min(vm, self.vm[r])
            if r in self.lg and not (only_w and ins.cls == "ds" and not self.smem):
                lg = self.lg[r] if lg is None else min(lg, self.lg[r])
        if vm is not None:
            vm = min(vm, 63)
        if lg is not None:
            lg = 0 if self.smem else min(lg, 15)
        self.apply_wait(vm, lg)
        if ins.cls == "vmem":
            self.vm = {k: n + 1 for k, n in self.vm.items()}
            for r in ins.writes:
                self.vm[r] = 0
        elif ins.cls in ("ds", "smem"):
            self.lg = {k: n + 1 for k, n in self.lg.items()}
            for r in ins.writes:
                self.lg[r] = 0
            if ins.cls == "smem":
                self.smem = True
        if vm is None and lg is None:
            return None
        return "s_waitcnt" + (f" vmcnt({vm})" if vm is not None else "") + (f" lgkmcnt({lg})" if lg is not None else "")


CAP = 24


class HazState:
    def __init__(self):
        self.ev = {}

    def copy(self):
        o = HazState()
        o.ev = dict(self.ev)
        return o

    def merge(self, other):
        ch = False
        for k, n in other.ev.items():
            if k not in self.ev or n < self.ev[k]:
                self.ev[k] = n
                ch = True
        return ch

    def advance(self, n):
        self.ev = {k: d + n for k, d in self.ev.items() if d + n < CAP}

    def step(self, ins):
        if ins.cls == "pseudo":
            return 0
        need = 0
        rd, wr = ins.reads, ins.writes
        isv = lambda r: r[0] in "va"
        for (kind, r, x), d in self.ev.items():
            req = 0
            if kind == "valu_w":
                if ins.cls == "mfma" and r in rd:
                    req = 2
                elif ins.cls == "valu" and r in rd:
                    if ins.dpp or ins.base.startswith("v_permlane"):
                        req = 2
                    elif ins.base in ("v_readlane_b32", "v_readfirstlane_b32"):
                        req = 1
            elif kind == "trans_w":
                if ins.cls in ("valu", "mfma") and r in rd and ins.base not in TRANS:
                    req = 1
            elif kind == "sdwa_w":
                if ins.cls in ("valu", "mfma") and (r in rd or r in wr):
                    req = 1
            elif kind == "dot_w":
                if ins.cls != "salu" and (r in rd or r in wr):
                    same = ins.cls == "valu" and ins.base == x
                    if same:
                        ab = set(regs_of(ins.ops[1]) + regs_of(ins.ops[2]))
                        req = 3 if r in ab else 0
                    else:
                        req = 3
            elif kind == "valu_sw":
                if r in rd:
                    if ins.cls == "vmem":
                        req = 5
                    elif ins.cls == "valu":
                        req = 4 if ins.base in ("v_readlane_b32", "v_writelane_b32") else 2
                    elif ins.cls in ("salu", "smem"):
                        req = 1
                if r == ("s", "exec"):
                    if ins.cls == "mfma":
                        req = max(req, 4)
                    elif ins.cls == "valu":
                        if ins.dpp:
                            req = max(req, 5)
                        elif ins.base.startswith(("v_permlane", "v_readlane", "v_readfirstlane", "v_writelane")):
                            req = max(req, 4)
            elif kind == "mfma_w":
                passes, dstt = x
                big = {4: 8, 8: 12}[passes]
                if ins.cls == "mfma":
                    if r in ins.srcab:
                        req = big
                    if r in ins.srcc or r in wr:
                        exact = tuple(ins.srcc) == dstt and ins.passes == passes
                        if r in ins.srcc and not exact:
                            req = max(req, {4: 6, 8: 10}[passes])
                        elif r not in ins.srcc and tuple(ins.dstt) != dstt:
                            req = max(req, {4: 6, 8: 10}[passes])
                elif ins.cls in ("valu", "vmem", "ds") and (r in rd or r in wr):
                    req = big
            elif kind == "mfma_c":
                if ins.cls == "valu" and r in wr:
                    req = {4: 3, 8: 7}[x]
            elif kind == "store_d":
                if r in wr:
                    req = 2 if ins.cls in ("valu", "mfma") else 1
            elif kind == "m0_w":
                if ins.lds_dma or "addtid" in ins.mn:
                    req = 1
            need = max(need, req - d)
        if need > 0:
            self.advance(need)
        if ins.mn == "s_nop":
            self.advance(int(ins.ops[0], 0) + 1)
        else:
            self.advance(1)
        killed = {r for r in wr}
        if killed:
            self.ev = {k: d for k, d in self.ev.items()
                       if not (k[1] in killed and k[0] in ("valu_w", "trans_w", "sdwa_w", "dot_w", "valu_sw"))}
        if ins.cls == "valu":
            for r in wr:
                if isv(r):
                    self.ev[("valu_w", r, 0)] = 0
                    if ins.base in TRANS:
                        self.ev[("trans_w", r, 0)] = 0
                    if ins.sdwa and "dst_sel:DWORD" not in ins.mods:
                        self.ev[("sdwa_w", r, 0)] = 0
                    if ins.base.startswith("v_dot"):
                        self.ev[("dot_w", r, ins.base)] = 0
                elif r[0] == "s":
                    self.ev[("valu_sw", r, 0)] = 0
        elif ins.cls == "mfma":
            self.ev = {k: d for k, d in self.ev.items() if not (k[0] == "mfma_w" and k[1] in wr)}
            for r in ins.dstt:
                self.ev[("mfma_w", r, (ins.passes, tuple(ins.dstt)))] = 0
            for r in ins.srcc:
                self.ev[("mfma_c", r, ins.passes)] = 0
        elif ins.cls == "vmem":
            for r in ins.store_data:
                self.ev[("store_d", r, 0)] = 0
        elif ins.cls == "salu" and ("s", "m0") in wr:
            self.ev[("m0_w", ("s", "m0"), 0)] = 0
        return max(need, 0)


class Kernel:
    def __init__(self, name):
        self.name = name
        self.items = []
        self._uid = 0

    def __call__(self, text, tok=None, need=None):
        for line in text.strip().split("\n"):
            line = line.split(";")[0].strip()
            if line:
                self.items.append(Ins(line, tok, need))

    def label(self, name):
        self.items.append(Label(name))

    def newlabel(self, stem):
        self._uid += 1
        return f"L_{self.name[:-7]}_{stem}_{self._uid}"

    def wait(self, *toks):
        self.items.append(Ins(None, need=list(toks)))

    def raw(self, text):
        self.items.append(Raw(text))

    def comment(self, text):
        self.items.append(Raw("    ; " + text))

    def _blocks(self, items):
        blocks, cur = [], []
        for it in items:
            if isinstance(it, Label) and cur:
                blocks.append(cur)
                cur = []
            cur.append(it)
            if isinstance(it, Ins) and (it.target or it.mn == "s_endpgm"):
                blocks.append(cur)
                cur = []
        if cur:
            blocks.append(cur)
        where = {}
        for i, b in enumerate(blocks):
            for it in b:
                if isinstance(it, Label):
                    where[it.name] = i
        succ = []
        for i, b in enumerate(blocks):
            last = next((it for it in reversed(b) if isinstance(it, Ins)), None)
            out = []
            ends = b[-1] is last and last is not None
            if ends and last.mn == "s_endpgm":
                pass
            elif ends and last.target:
                out.append(where[last.target])
                if last.mn != "s_branch" and i + 1 < len(blocks):
                    out.append(i + 1)
            elif i + 1 < len(blocks):
                out.append(i + 1)
            succ.append(out)
        return blocks, succ

    def _run(self, items, cls, make):
        blocks, succ = self._blocks(items)
        ins = [None] * len(blocks)
        ins[0] = cls()
        work = [0]
        while work:
            i = work.pop()
            st = ins[i].copy()
            for it in blocks[i]:
                if isinstance(it, Ins):
                    st.step(it)
            for j in succ[i]:
                if ins[j] is None:
                    ins[j] = st.copy()
                    work.append(j)
                elif ins[j].merge(st):
                    work.append(j)
        out = []
        for i, b in enumerate(blocks):
            st = (ins[i] or cls()).copy()
            for it in b:
                if isinstance(it, Ins):
                    extra = make(st.step(it))
                    out.extend(extra)
                out.append(it)
        return out

    def finish(self):
        items = self._run(self.items, WaitState, lambda w: [Ins(w)] if w else [])

        def nops(n):
            res = []
            while n > 0:
                k = min(n, 16)
                res.append(Ins(f"s_nop {k - 1}"))
                n -= k
            return res

        items = self._run(items, HazState, nops)
        lines = []
        hi = {"v": -1, "a": -1, "s": -1}
        for it in items:
            if isinstance(it, Label):
                lines.append(it.name + ":")
            elif isinstance(it, Raw):
                lines.append(it.text)
            elif it.text is not None:
                lines.append("    " + it.text)
                for r in it.reads | it.writes:
                    if r[0] in hi and isinstance(r[1], int):
                        hi[r[0]] = max(hi[r[0]], r[1])
        self.hi = hi
        return "\n".join(lines)

    def descriptor(self, min_vgpr=0):
        nv = self.hi["v"] + 1
        acc = max(4, (nv + 3) // 4 * 4)
        na = self.hi["a"] + 1
        nfv = acc + na if na else nv
        nfv = max(nfv, min_vgpr)
        assert nv <= 256 and nfv <= 512 and self.hi["s"] < 102, self.hi
        return "\n".join([
            f".amdhsa_kernel {self.name}",
            f"  .amdhsa_next_free_vgpr {nfv}",
            f"  .amdhsa_next_free_sgpr {max(self.hi['s'] + 1, 8)}",
            f"  .amdhsa_accum_offset {acc}",
            "  .amdhsa_group_segment_fixed_size 0",
            "  .amdhsa_kernarg_size 128",
            "  .amdhsa_user_sgpr_count 2",
            "  .amdhsa_user_sgpr_kernarg_segment_ptr 1",
            "  .amdhsa_system_sgpr_workgroup_id_x 1",
            "  .amdhsa_float_denorm_mode_32 3",
            ".end_amdhsa_kernel",
        ])


class Regs:
    def __init__(self, start=0, limit=256):
        self.n, self.limit = start, limit

    def __call__(self, cnt=1, align=None):
        al = align or (1 if cnt == 1 else 2)
        self.n = (self.n + al - 1) // al * al
        r = self.n
        self.n += cnt
        assert self.n <= self.limit, "out of registers"
        return r
```

```python
from asmgen import *
from layout import *

OOB = 0x80000000
LOG2E = 1.4426950408889634


def fbits(x):
    import struct
    return "0x%08x" % struct.unpack("<I", struct.pack("<f", x))[0]


def srd(k, r, karg):
    k(f"s_load_dwordx2 {s(r, 2)}, s[0:1], {karg}")
    k(f"s_mov_b32 {s(r + 2)}, {SIZES[karg]}")
    k(f"s_mov_b32 {s(r + 3)}, 0x20000")


def lo(k, d, src):
    k(f"v_lshlrev_b32 {v(d)}, 16, {v(src)}")


def hi(k, d, src, smask):
    k(f"v_and_b32 {v(d)}, {s(smask)}, {v(src)}")


def wave_id(k, sdst, vtmp):
    k(f"v_lshrrev_b32 {v(vtmp)}, 6, v0")
    k(f"v_readfirstlane_b32 {s(sdst)}, {v(vtmp)}")


class Stamper:
    def __init__(self, k, on, kidx, sws, stmp, vtmp):
        self.k, self.on, self.kidx, self.sws, self.st, self.vt = k, on, kidx, sws, stmp, vtmp

    def __call__(self, slot):
        if not self.on:
            return
        k, st, vt = self.k, self.st, self.vt
        k(f"s_memrealtime {s(st, 2)}")
        k(f"s_memtime {s(st + 6, 2)}")
        k(f"s_lshl_b32 {s(st + 2)}, s2, 7")
        k(f"s_add_u32 {s(st + 2)}, {s(st + 2)}, {TS + self.kidx * 0x10000 + slot * 8}")
        k(f"s_mov_b64 {s(st + 4, 2)}, exec")
        k(f"v_cmp_eq_u32 {s(st + 8, 2)}, 0, v0")
        k(f"s_and_b64 exec, exec, {s(st + 8, 2)}")
        k(f"v_mov_b32 {v(vt)}, {s(st)}")
        k(f"v_mov_b32 {v(vt + 1)}, {s(st + 6)}")
        k(f"buffer_store_dwordx2 {v(vt, 2)}, off, {s(self.sws, 4)}, {s(st + 2)}")
        k(f"s_mov_b64 exec, {s(st + 4, 2)}")
```

```python
import importlib
import os
import sys

sys.path.insert(0, os.path.dirname(os.path.abspath(__file__)))
NAME = "adaLN_cond__ssm_conv_h3__mixer_gmlp__prompt"


def header():
    ref = open(os.path.join(os.path.dirname(os.path.abspath(__file__)), "..", NAME + ".s.ref")).read().split("\n")
    return [l for l in ref if l.startswith(";") and "@launch" not in l and "launch geometry" not in l
            and "Harness parses" not in l]


def generate(mods, stamps=False, opts=None):
    launches, bodies, descs = [], [], []
    for m in mods:
        mod = importlib.import_module(m)
        kw = {"stamps": stamps}
        if opts and getattr(mod, "TAKES_OPTS", False):
            kw["opts"] = opts
        k, grid, block, lds = mod.build(m + "_kernel", **kw)
        body = k.finish()
        launches.append(f"; @launch kernel={k.name} grid=({grid},1,1) block=({block},1,1) lds={lds}")
        bodies.append(f".globl {k.name}\n.p2align 8\n.type {k.name},@function\n{k.name}:\n{body}")
        descs.append(".p2align 6\n" + k.descriptor())
    out = header() + launches + ['.amdgcn_target "amdgcn-amd-amdhsa--gfx950"', ".text"] + bodies
    out += ['.section .rodata,"a"'] + descs
    return "\n".join(out) + "\n"


if __name__ == "__main__":
    mods = ["k0", "k1", "k2", "k3", "k4"]
    opts = {}
    for arg in sys.argv[2:]:
        if arg.startswith("only="):
            mods = arg[5:].split(",")
        elif "=" in arg:
            kk, vv = arg.split("=")
            opts[kk] = int(vv, 0)
    open(sys.argv[1], "w").write(generate(mods, "stamps" in sys.argv[2:], opts))
```

```python
from common import *

K0_LDS = 8 * 2064 + 16 * 1040


def kv_role(k, sws, smask):
    sk, sv, sq, sw = 8, 12, 16, 20
    srd(k, sk, A_K)
    srd(k, sv, A_V)
    srd(k, sq, A_Q)
    srd(k, sw, A_SHIFT)
    scg, ssb, st = 24, 25, 26
    R = Regs(1)
    voc, vrg, vb, vh, vw, vt = R(), R(), R(), R(), R(), R()
    K = [R(4) for _ in range(7)]
    V = [R(4) for _ in range(4)]
    Q = [R(4) for _ in range(4)]
    WR = [R(4) for _ in range(4)]
    k(f"s_lshr_b32 {s(scg)}, s2, 4")
    k(f"s_and_b32 {s(ssb)}, s2, 15")
    k(f"v_and_b32 {v(voc)}, 7, v0")
    k(f"v_lshrrev_b32 {v(vrg)}, 3, v0")
    k(f"s_mul_i32 {s(st)}, {s(ssb)}, {128 * 1280}")
    k(f"s_lshl_b32 {s(st + 1)}, {s(scg)}, 7")
    k(f"s_add_u32 {s(st)}, {s(st)}, {s(st + 1)}")
    k(f"v_mul_u32_u24 {v(vb)}, {4 * 1280}, {v(vrg)}")
    k(f"v_lshl_add_u32 {v(vb)}, {v(voc)}, 4, {v(vb)}")
    k(f"v_add_u32 {v(vb)}, {s(st)}, {v(vb)}")
    k(f"v_subrev_u32 {v(vh)}, 3840, {v(vb)}")
    k(f"s_lshl_b32 {s(st + 1)}, {s(scg)}, 9")
    k(f"v_lshl_add_u32 {v(vw)}, {v(voc)}, 6, {s(st + 1)}")
    for i in range(4):
        k(f"buffer_load_dwordx4 {v(WR[i], 4)}, {v(vw)}, {s(sw, 4)}, 0 offen offset:{16 * i}")
    for i in range(4):
        k(f"buffer_load_dwordx4 {v(K[3 + i], 4)}, {v(vb)}, {s(sk, 4)}, 0 offen offset:{1280 * i}")
    for i in range(4):
        k(f"buffer_load_dwordx4 {v(V[i], 4)}, {v(vb)}, {s(sv, 4)}, 0 offen offset:{1280 * i}")
    for i in range(3):
        k(f"buffer_load_dwordx4 {v(K[i], 4)}, {v(vh)}, {s(sk, 4)}, 0 offen offset:{1280 * i}")
    for i in range(4):
        k(f"buffer_load_dwordx4 {v(Q[i], 4)}, {v(vb)}, {s(sq, 4)}, 0 offen offset:{1280 * i}")
    vua, vqa = R(), R()
    k(f"v_mul_u32_u24 {v(vua)}, 2064, {v(voc)}")
    k(f"v_bfe_u32 {v(vt)}, {v(vrg)}, 1, 1")
    k(f"v_lshl_add_u32 {v(vua)}, {v(vt)}, 7, {v(vua)}")
    k(f"v_lshrrev_b32 {v(vt)}, 2, {v(vrg)}")
    k(f"v_lshl_add_u32 {v(vua)}, {v(vt)}, 4, {v(vua)}")
    k(f"v_and_b32 {v(vt)}, 1, {v(vrg)}")
    k(f"v_xor_b32 {v(vt)}, 1, {v(vt)}")
    k(f"v_lshl_add_u32 {v(vua)}, {v(vt)}, 3, {v(vua)}")
    QB = 8 * 2064
    k(f"v_mul_u32_u24 {v(vqa)}, 2080, {v(voc)}")
    k(f"v_lshrrev_b32 {v(vt)}, 3, {v(vrg)}")
    k(f"v_lshl_add_u32 {v(vqa)}, {v(vt)}, 8, {v(vqa)}")
    k(f"v_and_b32 {v(vt)}, 7, {v(vrg)}")
    k(f"v_lshl_add_u32 {v(vqa)}, {v(vt)}, 4, {v(vqa)}")
    k(f"v_add_u32 {v(vqa)}, {QB}, {v(vqa)}")
    vur, vug, vqr, vqg = R(), R(), R(), R()
    k(f"v_lshrrev_b32 {v(vt)}, 7, v0")
    k(f"v_mul_u32_u24 {v(vur)}, 2064, {v(vt)}")
    k(f"v_and_b32 {v(vt)}, 127, v0")
    k(f"v_lshl_add_u32 {v(vur)}, {v(vt)}, 4, {v(vur)}")
    k(f"v_lshrrev_b32 {v(vt)}, 3, v0")
    k(f"v_lshlrev_b32 {v(vug)}, 11, {v(vt)}")
    k(f"v_lshl_add_u32 {v(vug)}, {v(voc)}, 4, {v(vug)}")
    k(f"v_lshrrev_b32 {v(vt)}, 6, v0")
    k(f"v_mul_u32_u24 {v(vqr)}, 1040, {v(vt)}")
    k(f"v_lshlrev_b32 {v(vqg)}, 14, {v(vt)}")
    k(f"v_and_b32 {v(vt)}, 63, v0")
    k(f"v_lshl_add_u32 {v(vqr)}, {v(vt)}, 4, {v(vqr)}")
    k(f"v_lshl_add_u32 {v(vqg)}, {v(vt)}, 4, {v(vqg)}")
    su, sqo = 28, 32
    k(f"s_lshl_b32 {s(st)}, {s(scg)}, 18")
    k(f"s_lshl_b32 {s(st + 1)}, {s(ssb)}, 7")
    k(f"s_add_u32 {s(su)}, {s(st)}, {s(st + 1)}")
    k(f"s_add_u32 {s(su)}, {s(su)}, {UT}")
    k(f"s_lshl_b32 {s(st + 1)}, {s(ssb)}, 10")
    k(f"s_add_u32 {s(sqo)}, {s(st)}, {s(st + 1)}")
    k(f"s_add_u32 {s(sqo)}, {s(sqo)}, {QT}")
    for i in range(1, 4):
        k(f"s_add_u32 {s(su + i)}, {s(su)}, {65536 * i}")
        k(f"s_add_u32 {s(sqo + i)}, {s(sqo)}, {65536 * i}")
    WP = [R(2) for _ in range(4)]
    KU = [R(2) for _ in range(7)]
    VU = [R(2) for _ in range(4)]
    AC = [R(2) for _ in range(4)]
    PK = [R(2) for _ in range(2)]
    for p in range(4):
        for e in range(2):
            lo(k, WP[0] + e, WR[p] + 2 * e)
            hi(k, WP[1] + e, WR[p] + 2 * e, smask)
            lo(k, WP[2] + e, WR[p] + 2 * e + 1)
            hi(k, WP[3] + e, WR[p] + 2 * e + 1, smask)
        for i in (3, 4, 5, 6, 0, 1, 2):
            lo(k, KU[i], K[i] + p)
            hi(k, KU[i] + 1, K[i] + p, smask)
        for i in range(4):
            lo(k, VU[i], V[i] + p)
            hi(k, VU[i] + 1, V[i] + p, smask)
        for r in range(4):
            k(f"v_pk_mul_f32 {v(AC[r], 2)}, {v(KU[r], 2)}, {v(WP[3], 2)}")
        for j in (2, 1, 0):
            for r in range(4):
                k(f"v_pk_fma_f32 {v(AC[r], 2)}, {v(KU[r + 3 - j], 2)}, {v(WP[j], 2)}, {v(AC[r], 2)}")
        for r in range(4):
            k(f"v_pk_mul_f32 {v(AC[r], 2)}, {v(AC[r], 2)}, {v(VU[r], 2)}")
        for e in range(2):
            k(f"v_cvt_pk_bf16_f32 {v(PK[e])}, {v(AC[3] + e)}, {v(AC[2] + e)}")
            k(f"v_cvt_pk_bf16_f32 {v(PK[e] + 1)}, {v(AC[1] + e)}, {v(AC[0] + e)}")
            k(f"ds_write_b64 {v(vua)}, {v(PK[e], 2)} offset:{(2 * p + e) * 256}")
    for h in range(2):
        for par in range(2):
            o = (h * 1040 + par * 128) // 8
            k(f"ds_write2_b64 {v(vqa)}, {v(Q[par] + 2 * h, 2)}, {v(Q[par + 2] + 2 * h, 2)} offset0:{o} offset1:{o + 1}")
    k("s_waitcnt lgkmcnt(0)")
    k("s_barrier")
    for i in range(4):
        k(f"ds_read_b128 {v(K[i], 4)}, {v(vur)} offset:{4128 * i}")
    for i in range(4):
        k(f"ds_read_b128 {v(V[i], 4)}, {v(vqr)} offset:{QB + 4160 * i}")
    for i in range(4):
        k(f"buffer_store_dwordx4 {v(K[i], 4)}, {v(vug)}, {s(sws, 4)}, {s(su + i)} offen")
    for i in range(4):
        k(f"buffer_store_dwordx4 {v(V[i], 4)}, {v(vqg)}, {s(sws, 4)}, {s(sqo + i)} offen")


def gemv_role(k, sws, smask, first):
    sw, sc = 8, 12
    srd(k, sw, W_MOD)
    srd(k, sc, C_)
    sblk, st = 16, 17
    R = Regs(1)
    voc, vrg, vb, vc, vt = R(), R(), R(), R(), R()
    CR = R(10)
    W = [R(4) for _ in range(20)]
    SI = R(20)
    AC = R(8, 4)
    U = R(8)
    k(f"s_sub_u32 {s(sblk)}, s2, {first}")
    k(f"v_and_b32 {v(voc)}, 7, v0")
    k(f"v_lshrrev_b32 {v(vrg)}, 3, v0")
    k(f"v_mul_u32_u24 {v(vc)}, 40, {v(vrg)}")
    k(f"v_mul_u32_u24 {v(vb)}, {20 * 7680}, {v(vrg)}")
    k(f"v_lshl_add_u32 {v(vb)}, {v(voc)}, 4, {v(vb)}")
    k(f"s_lshl_b32 {s(st)}, {s(sblk)}, 7")
    k(f"buffer_load_dwordx4 {v(CR, 4)}, {v(vc)}, {s(sc, 4)}, 0 offen")
    k(f"buffer_load_dwordx4 {v(CR + 4, 4)}, {v(vc)}, {s(sc, 4)}, 0 offen offset:16")
    k(f"buffer_load_dwordx2 {v(CR + 8, 2)}, {v(vc)}, {s(sc, 4)}, 0 offen offset:32")
    for n in range(20):
        k(f"buffer_load_dwordx4 {v(W[n], 4)}, {v(vb)}, {s(sw, 4)}, {s(st)} offen")
        if n < 19:
            k(f"s_add_u32 {s(st)}, {s(st)}, 7680")
    snl = 18
    k(f"s_mov_b32 {s(snl)}, {fbits(-LOG2E)}")
    for p in range(10):
        x0, x1, e0, e1 = U, U + 1, U + 2, U + 3
        lo(k, x0, CR + p)
        hi(k, x1, CR + p, smask)
        k(f"v_mul_f32 {v(e0)}, {s(snl)}, {v(x0)}")
        k(f"v_mul_f32 {v(e1)}, {s(snl)}, {v(x1)}")
        k(f"v_exp_f32 {v(e0)}, {v(e0)}")
        k(f"v_exp_f32 {v(e1)}, {v(e1)}")
        k(f"v_add_f32 {v(e0)}, 1.0, {v(e0)}")
        k(f"v_add_f32 {v(e1)}, 1.0, {v(e1)}")
        k(f"v_rcp_f32 {v(e0)}, {v(e0)}")
        k(f"v_rcp_f32 {v(e1)}, {v(e1)}")
        k(f"v_mul_f32 {v(x0)}, {v(x0)}, {v(e0)}")
        k(f"v_mul_f32 {v(x1)}, {v(x1)}, {v(e1)}")
        k(f"v_cvt_pk_bf16_f32 {v(x0)}, {v(x0)}, {v(x1)}")
        lo(k, SI + 2 * p, x0)
        hi(k, SI + 2 * p + 1, x0, smask)
    for n in range(20):
        for p in range(4):
            lo(k, U + 2 * p, W[n] + p)
            hi(k, U + 2 * p + 1, W[n] + p, smask)
        sel = n & 1
        for p in range(4):
            if n == 0:
                k(f"v_pk_mul_f32 {v(AC + 2 * p, 2)}, {v(U + 2 * p, 2)}, {v(SI, 2)} op_sel:[0,0] op_sel_hi:[1,0]")
            else:
                k(f"v_pk_fma_f32 {v(AC + 2 * p, 2)}, {v(U + 2 * p, 2)}, {v(SI + n - sel, 2)}, {v(AC + 2 * p, 2)} "
                  f"op_sel:[0,{sel},0] op_sel_hi:[1,{sel},1]")
    k(f"v_lshlrev_b32 {v(vt)}, 5, v0")
    k(f"ds_write_b128 {v(vt)}, {v(AC, 4)}")
    k(f"ds_write_b128 {v(vt)}, {v(AC + 4, 4)} offset:16")
    k("s_waitcnt lgkmcnt(0)")
    k("s_barrier")
    done = k.newlabel("gemv_done")
    wave_id(k, st, vt)
    k(f"s_cmp_lg_u32 {s(st)}, 0")
    k(f"s_cbranch_scc1 {done}")
    k(f"v_lshlrev_b32 {v(vt)}, 2, v0")
    for n in range(16):
        k(f"ds_read2st64_b32 {v(W[n], 2)}, {v(vt)} offset0:{2 * n} offset1:{2 * n + 1}")
    for n in range(1, 16):
        k(f"v_pk_add_f32 {v(W[0], 2)}, {v(W[0], 2)}, {v(W[n], 2)}")
    k(f"v_add_f32 {v(U)}, {v(W[0])}, {v(W[0] + 1)}")
    k(f"v_cvt_pk_bf16_f32 {v(U)}, {v(U)}, {v(U)}")
    lo(k, U, U)
    k(f"s_cmp_ge_u32 {s(sblk)}, 30")
    k(f"s_cselect_b32 {s(st)}, 30, 0")
    k(f"s_sub_u32 {s(st)}, {s(sblk)}, {s(st)}")
    k(f"s_sub_u32 {s(st)}, {s(st)}, 10")
    k(f"s_cmp_lt_u32 {s(st)}, 10")
    k(f"s_cselect_b32 {s(st)}, 1.0, 0")
    k(f"v_add_f32 {v(U)}, {s(st)}, {v(U)}")
    k(f"v_cvt_pk_bf16_f32 {v(U)}, {v(U)}, {v(U)}")
    lo(k, U, U)
    k(f"s_lshl_b32 {s(st)}, {s(sblk)}, 8")
    k(f"buffer_store_dword {v(U)}, {v(vt)}, {s(sws, 4)}, {s(st)} offen offset:{MOD}")
    k.label(done)


def stats_role(k, sws, first):
    sq = 8
    srd(k, sq, A_Q)
    sblk, st, sone = 16, 17, 22
    R = Regs(1)
    vb, vt, vo, vq = R(), R(), R(), R()
    X = [[R(4) for _ in range(5)] for _ in range(4)]
    S1, S2 = R(4), R(4)
    T = R(4)
    k(f"s_sub_u32 {s(sblk)}, s2, {first}")
    k(f"s_mul_i32 {s(st)}, {s(sblk)}, {64 * 1280}")
    for i in range(1, 4):
        k(f"s_add_u32 {s(st + i)}, {s(st)}, {5120 * i}")
    k(f"s_mov_b32 {s(sone)}, 0x3f803f80")
    k(f"v_lshrrev_b32 {v(vt)}, 6, v0")
    k(f"v_bfe_u32 {v(vq)}, v0, 4, 2")
    k(f"v_lshl_add_u32 {v(vb)}, {v(vt)}, 4, {v(vq)}")
    k(f"v_mul_u32_u24 {v(vb)}, 1280, {v(vb)}")
    k(f"v_and_b32 {v(vo)}, 15, v0")
    k(f"v_lshl_add_u32 {v(vb)}, {v(vo)}, 4, {v(vb)}")
    for i in range(4):
        for j in range(5):
            k(f"buffer_load_dwordx4 {v(X[i][j], 4)}, {v(vb)}, {s(sq, 4)}, {s(st + i)} offen offset:{256 * j}")
    k(f"v_cmp_eq_u32 vcc, 0, {v(vo)}")
    k(f"v_lshrrev_b32 {v(vo)}, 1, {v(vt)}")
    k(f"v_lshlrev_b32 {v(vo)}, 8, {v(vo)}")
    k(f"v_and_b32 {v(vt)}, 1, {v(vt)}")
    k(f"v_lshl_add_u32 {v(vo)}, {v(vt)}, 6, {v(vo)}")
    k(f"v_and_b32 {v(vt)}, 1, {v(vq)}")
    k(f"v_lshl_add_u32 {v(vo)}, {v(vt)}, 7, {v(vo)}")
    k(f"v_lshrrev_b32 {v(vt)}, 1, {v(vq)}")
    k(f"v_lshl_add_u32 {v(vo)}, {v(vt)}, 2, {v(vo)}")
    k(f"s_lshl_b32 {s(st)}, {s(sblk)}, 9")
    k(f"s_add_u32 {s(st)}, {s(st)}, {STAT1}")
    for i in range(4):
        k(f"v_mov_b32 {v(S1 + i)}, 0")
        k(f"v_mov_b32 {v(S2 + i)}, 0")
    for i in range(4):
        for j in range(5):
            for e in range(4):
                k(f"v_dot2c_f32_bf16 {v(S1 + i)}, {s(sone)}, {v(X[i][j] + e)}")
                k(f"v_dot2c_f32_bf16 {v(S2 + i)}, {v(X[i][j] + e)}, {v(X[i][j] + e)}")
    for sh in (8, 4, 2, 1):
        for i in range(4):
            for A in (S1, S2):
                k(f"v_add_f32_dpp {v(A + i)}, {v(A + i)}, {v(A + i)} row_ror:{sh} row_mask:0xf bank_mask:0xf")
    for i in range(4):
        k(f"v_mul_f32 {v(S1 + i)}, {fbits(1.0 / D)}, {v(S1 + i)}")
        k(f"v_mul_f32 {v(S2 + i)}, {fbits(1.0 / D)}, {v(S2 + i)}")
    for i in range(4):
        k(f"v_fma_f32 {v(S2 + i)}, -{v(S1 + i)}, {v(S1 + i)}, {v(S2 + i)}")
        k(f"v_max_f32 {v(S2 + i)}, 0, {v(S2 + i)}")
        k(f"v_add_f32 {v(S2 + i)}, {fbits(1e-5)}, {v(S2 + i)}")
        k(f"v_rsq_f32 {v(S2 + i)}, {v(S2 + i)}")
    for i in range(4):
        k(f"v_mul_f32 {v(T + i)}, -{v(S1 + i)}, {v(S2 + i)}")
    k("s_and_b64 exec, exec, vcc")
    for i in range(4):
        k(f"buffer_store_dword {v(S2 + i)}, {v(vo)}, {s(sws, 4)}, {s(st)} offen offset:{16 * i}")
        k(f"buffer_store_dword {v(T + i)}, {v(vo)}, {s(sws, 4)}, {s(st)} offen offset:{16 * i + 8}")


def gran_role(k, sws, first):
    st = 16
    k(f"s_sub_u32 {s(st)}, s2, {first}")
    k(f"s_lshl_b32 {s(st)}, {s(st)}, 15")
    k(f"s_add_u32 {s(st)}, {s(st)}, {GRAN}")
    k("v_lshlrev_b32 v1, 4, v0")
    for i in range(4):
        k(f"v_mov_b32 {v(2 + i)}, -1")
    for i in range(8):
        k(f"buffer_store_dwordx4 v[2:5], v1, {s(sws, 4)}, {s(st)} offen")
        if i < 7:
            k(f"s_add_u32 {s(st)}, {s(st)}, 4096")


def build(name, stamps=False):
    k = Kernel(name)
    sws, smask = 4, 3
    end = k.newlabel("end")
    lg, ls, lz = k.newlabel("gemv"), k.newlabel("stats"), k.newlabel("gran")
    k("s_cmp_ge_u32 s2, 256")
    k(f"s_cbranch_scc1 {end}")
    srd(k, sws, WS)
    k(f"s_mov_b32 {s(smask)}, 0xffff0000")
    T = Stamper(k, stamps, 0, sws, 90, 250)
    T(0)
    fin = k.newlabel("fin")
    k("s_cmp_ge_u32 s2, 160")
    k(f"s_cbranch_scc1 {lg}")
    kv_role(k, sws, smask)
    k(f"s_branch {fin}")
    k.label(lg)
    k("s_cmp_ge_u32 s2, 220")
    k(f"s_cbranch_scc1 {ls}")
    gemv_role(k, sws, smask, 160)
    k(f"s_branch {fin}")
    k.label(ls)
    k("s_cmp_ge_u32 s2, 252")
    k(f"s_cbranch_scc1 {lz}")
    stats_role(k, sws, 220)
    k(f"s_branch {fin}")
    k.label(lz)
    gran_role(k, sws, 252)
    k.label(fin)
    T(1)
    k.label(end)
    k("s_endpgm")
    return k, 256, 256, K0_LDS
```

```python
from common import *

TSZ = 8 * 4128
USZ = 2 * 2304
UBASE = 4 * TSZ
K1_LDS = UBASE + 4 * USZ


def conv_role(k, sws, smask, T):
    sf, sd = 8, 12
    srd(k, sf, A_SSMK)
    srd(k, sd, A_SSMD)
    sw, sch, stb, sub, st = 16, 17, 18, 19, 20
    R = Regs(1)
    vl, vt, vt2, vb, vlo = R(), R(), R(), R(), R()
    wave_id(k, sw, vt)
    k(f"v_and_b32 {v(vl)}, 63, v0")
    k(f"s_lshl_b32 {s(sch)}, s2, 2")
    k(f"s_add_u32 {s(sch)}, {s(sch)}, {s(sw)}")
    k(f"s_mul_i32 {s(stb)}, {s(sw)}, {TSZ}")
    k(f"s_mul_i32 {s(sub)}, {s(sw)}, {USZ}")
    k(f"s_add_u32 {s(sub)}, {s(sub)}, {UBASE}")
    k(f"s_lshl_b32 {s(st)}, {s(sch)}, 12")
    k(f"v_lshl_add_u32 {v(vb)}, {v(vl)}, 4, {s(st)}")
    k(f"v_subrev_u32 {v(vlo)}, 16, {v(vb)}")
    k(f"v_cmp_eq_u32 vcc, 0, {v(vl)}")
    k(f"v_mov_b32 {v(vt)}, {OOB}")
    k(f"v_cndmask_b32 {v(vlo)}, {v(vlo)}, {v(vt)}, vcc")
    W = [R(8) for _ in range(4)]
    for r in range(4):
        if r == 0:
            k(f"buffer_load_dwordx4 {v(W[r], 4)}, {v(vlo)}, {s(sf, 4)}, 0 offen")
        else:
            k(f"buffer_load_dwordx4 {v(W[r], 4)}, {v(vb)}, {s(sf, 4)}, 0 offen offset:{1024 * r - 16}")
        k(f"buffer_load_dwordx4 {v(W[r] + 4, 4)}, {v(vb)}, {s(sf, 4)}, 0 offen offset:{1024 * r}")
    vD = R()
    k(f"s_lshl_b32 {s(st + 1)}, {s(sch)}, 1")
    k(f"buffer_load_ushort {v(vD)}, off, {s(sd, 4)}, {s(st + 1)}")
    k(f"s_mov_b32 {s(st + 1)}, {UT}")
    for p in range(2):
        k(f"s_add_u32 m0, {s(sub)}, {p * 2304 + 256 - p * 2048}")
        for h in range(2):
            k(f"buffer_load_dwordx4 {v(vb)}, {s(sws, 4)}, {s(st + 1)} offen offset:{p * 2048 + h * 1024} lds", tok="u")
    vq = R()
    QX = [R(4) for _ in range(4)]
    ST = [R(4) for _ in range(4)]
    MS, MC, MG = R(4), R(4), R(4)
    k(f"v_lshlrev_b32 {v(vq)}, 4, v0")
    sq, sx, ss = 24, 28, 32
    k(f"s_lshl_b32 {s(st + 1)}, s2, 14")
    for j in range(4):
        k(f"s_add_u32 {s(sq + j)}, {s(st + 1)}, {QT + 4096 * j}")
        k(f"s_add_u32 {s(sx + j)}, {s(st + 1)}, {X1 + 4096 * j}")
        k(f"s_mov_b32 {s(ss + j)}, {STAT1 + 4096 * j}")
    for j in range(4):
        k(f"buffer_load_dwordx4 {v(QX[j], 4)}, {v(vq)}, {s(sws, 4)}, {s(sq + j)} offen")
        k(f"buffer_load_dwordx4 {v(ST[j], 4)}, {v(vq)}, {s(sws, 4)}, {s(ss + j)} offen")
    k(f"s_lshl_b32 {s(st + 1)}, s2, 4")
    k(f"s_add_u32 {s(st + 2)}, {s(st + 1)}, {MOD + 2 * 2560}")
    k(f"buffer_load_dwordx4 {v(MS, 4)}, off, {s(sws, 4)}, {s(st + 1)} offset:{MOD}")
    k(f"buffer_load_dwordx4 {v(MC, 4)}, off, {s(sws, 4)}, {s(st + 1)} offset:{MOD + 2560}")
    k(f"buffer_load_dwordx4 {v(MG, 4)}, off, {s(sws, 4)}, {s(st + 2)}")
    Z = R(4)
    for i in range(4):
        k(f"v_mov_b32 {v(Z + i)}, 0")
    k(f"v_lshrrev_b32 {v(vt)}, 4, {v(vl)}")
    k(f"v_mul_u32_u24 {v(vt)}, 2304, {v(vt)}")
    k(f"v_and_b32 {v(vt2)}, 15, {v(vl)}")
    k(f"v_lshl_add_u32 {v(vt)}, {v(vt2)}, 4, {v(vt)}")
    k(f"v_add_u32 {v(vt)}, {s(sub)}, {v(vt)}")
    k(f"v_and_b32 {v(vt2)}, 7, {v(vl)}")
    k(f"v_mul_u32_u24 {v(vt2)}, 4128, {v(vt2)}")
    k(f"v_add_u32 {v(vt2)}, {s(stb)}, {v(vt2)}")
    k(f"v_cmp_lt_u32 vcc, 31, {v(vl)}")
    k(f"v_cndmask_b32 {v(vt)}, {v(vt)}, {v(vt2)}, vcc")
    k(f"ds_write_b128 {v(vt)}, {v(Z, 4)}")
    vg, vbb, vgam, vaa, vba, vya = R(), R(), R(), R(), R(), R()
    k(f"v_lshrrev_b32 {v(vg)}, 4, {v(vl)}")
    k(f"v_bfe_u32 {v(vt)}, {v(vl)}, 3, 1")
    k(f"v_bfe_u32 {v(vt2)}, {v(vl)}, 2, 1")
    k(f"v_xor_b32 {v(vt2)}, {v(vt)}, {v(vt2)}")
    k(f"v_and_b32 {v(vbb)}, 3, {v(vl)}")
    k(f"v_lshl_add_u32 {v(vbb)}, {v(vbb)}, 1, {v(vt)}")
    k(f"v_mul_u32_u24 {v(vaa)}, 4128, {v(vbb)}")
    k(f"v_lshl_add_u32 {v(vaa)}, {v(vt2)}, 4, {v(vaa)}")
    k(f"v_lshl_add_u32 {v(vbb)}, {v(vt2)}, 3, {v(vbb)}")
    k(f"v_and_b32 {v(vt)}, 1, {v(vg)}")
    k(f"v_lshrrev_b32 {v(vt2)}, 1, {v(vg)}")
    k(f"v_lshl_add_u32 {v(vgam)}, {v(vt)}, 1, {v(vt2)}")
    k(f"v_mul_u32_u24 {v(vba)}, 2304, {v(vt2)}")
    k(f"v_and_b32 {v(vt2)}, 15, {v(vl)}")
    k(f"v_add_u32 {v(vt)}, {v(vt)}, {v(vt2)}")
    k(f"v_lshl_add_u32 {v(vba)}, {v(vt)}, 4, {v(vba)}")
    k(f"s_add_u32 {s(st + 1)}, {s(sub)}, {16 + 7 * 32}")
    k(f"v_add_u32 {v(vba)}, {s(st + 1)}, {v(vba)}")
    k(f"v_sub_u32 {v(vt)}, 3, {v(vgam)}")
    k(f"v_lshl_add_u32 {v(vaa)}, {v(vt)}, 4, {v(vaa)}")
    k(f"v_add_u32 {v(vaa)}, {s(stb)}, {v(vaa)}")
    k(f"v_bfe_u32 {v(vt)}, {v(vl)}, 5, 1")
    k(f"v_bfe_u32 {v(vt2)}, {v(vl)}, 4, 1")
    k(f"v_xor_b32 {v(vt2)}, {v(vt)}, {v(vt2)}")
    k(f"v_lshl_add_u32 {v(vya)}, {v(vt)}, 2, {v(vt2)}")
    k(f"v_and_b32 {v(vt)}, 1, {v(vl)}")
    k(f"v_lshl_add_u32 {v(vya)}, {v(vt)}, 1, {v(vya)}")
    k(f"v_bfe_u32 {v(vt)}, {v(vl)}, 1, 1")
    k(f"v_and_b32 {v(vt2)}, 4, {v(vl)}")
    k(f"v_or_b32 {v(vt)}, {v(vt)}, {v(vt2)}")
    k(f"v_xor_b32 {v(vya)}, {v(vt)}, {v(vya)}")
    k(f"v_bfe_u32 {v(vt)}, {v(vl)}, 1, 3")
    k(f"v_lshl_add_u32 {v(vya)}, {v(vt)}, 3, {v(vya)}")
    k(f"v_lshl_add_u32 {v(vya)}, {v(vya)}, 4, {s(stb)}")
    vtw = R()
    k(f"v_lshl_add_u32 {v(vtw)}, {v(vl)}, 4, {s(stb)}")
    O0, O1, W1 = R(6), R(6), R(6)
    for r in range(4):
        w = W[r]
        off = lambda sh: sh * 4128 + 16 + r * 1024
        k(f"ds_write_b128 {v(vtw)}, {v(w + 2, 4)} offset:{off(3)}")
        k(f"ds_write_b128 {v(vtw)}, {v(w + 4, 4)} offset:{off(7)}")
        for j in range(6):
            k(f"v_alignbit_b32 {v(O0 + j)}, {v(w + j + 1)}, {v(w + j)}, 16")
        k(f"ds_write_b128 {v(vtw)}, {v(O0, 4)} offset:{off(0)}")
        k(f"ds_write_b128 {v(vtw)}, {v(O0 + 2, 4)} offset:{off(4)}")
        for j in range(6):
            k(f"v_mov_b32 {v(W1 + j)}, {v(w + j + 1)}")
        k(f"ds_write_b128 {v(vtw)}, {v(W1, 4)} offset:{off(1)}")
        k(f"ds_write_b128 {v(vtw)}, {v(W1 + 2, 4)} offset:{off(5)}")
        for j in range(6):
            k(f"v_alignbit_b32 {v(O1 + j)}, {v(w + j + 2)}, {v(w + j + 1)}, 16")
        k(f"ds_write_b128 {v(vtw)}, {v(O1, 4)} offset:{off(2)}")
        k(f"ds_write_b128 {v(vtw)}, {v(O1 + 2, 4)} offset:{off(6)}")
    DF = R(4, 4)
    k(f"v_lshlrev_b32 {v(vt)}, 3, {v(vgam)}")
    k(f"v_sub_u32 {v(vt)}, {v(vt)}, {v(vbb)}")
    k(f"v_subrev_u32 {v(vt)}, 9, {v(vt)}")
    k(f"v_and_b32 {v(vt2)}, 1, {v(vt)}")
    k(f"v_lshlrev_b32 {v(vt2)}, 4, {v(vt2)}")
    k(f"v_lshlrev_b32 {v(vD)}, {v(vt2)}, {v(vD)}")
    k(f"v_ashrrev_i32 {v(vt)}, 1, {v(vt)}")
    for i in range(4):
        k(f"v_cmp_eq_u32 vcc, {i}, {v(vt)}")
        k(f"v_cndmask_b32 {v(DF + i)}, 0, {v(vD)}, vcc")
    T(1)
    A = [R(4, 4) for _ in range(8)]
    B = [R(4, 4) for _ in range(8)]
    AC = [R(4, 4) for _ in range(8)]
    k.wait("u")
    T(2)
    for i in range(8):
        k(f"ds_read_b128 {v(B[i], 4)}, {v(vba)} offset:{256 * i}")
    for i in range(7, -1, -1):
        k(f"ds_read_b128 {v(A[i], 4)}, {v(vaa)} offset:{512 * i}")
    for i in range(8):
        k(f"v_mfma_f32_16x16x32_bf16 {v(AC[i], 4)}, {v(DF, 4)}, {v(B[i], 4)}, 0")
    k(f"s_mov_b32 {s(st)}, 8")
    loop = k.newlabel("conv")
    k.label(loop)
    k(f"v_add_u32 {v(vaa)}, 64, {v(vaa)}")
    k(f"v_subrev_u32 {v(vba)}, 32, {v(vba)}")
    for s1 in range(7, -1, -1):
        for t1 in range(8 - s1):
            k(f"v_mfma_f32_16x16x32_bf16 {v(AC[s1 + t1], 4)}, {v(A[s1], 4)}, {v(B[t1], 4)}, {v(AC[s1 + t1], 4)}")
            if s1 == 0:
                k(f"ds_read_b128 {v(B[t1], 4)}, {v(vba)} offset:{256 * t1}")
        k(f"ds_read_b128 {v(A[s1], 4)}, {v(vaa)} offset:{512 * s1}")
    k(f"s_sub_u32 {s(st)}, {s(st)}, 1")
    k(f"s_cmp_lg_u32 {s(st)}, 0")
    k(f"s_cbranch_scc1 {loop}")
    T(3)
    for i in range(8):
        k(f"ds_write_b128 {v(vya)}, {v(AC[i], 4)} offset:{1024 * i}")
    vy0, vy1 = R(), R()
    k(f"v_bfe_u32 {v(vt)}, v0, 4, 1")
    k(f"v_bfe_u32 {v(vt2)}, v0, 5, 1")
    k(f"v_lshl_add_u32 {v(vt)}, {v(vt2)}, 2, {v(vt)}")
    k(f"v_lshlrev_b32 {v(vt)}, 1, {v(vt)}")
    k(f"v_xor_b32 {v(vt)}, v0, {v(vt)}")
    k(f"v_lshlrev_b32 {v(vy0)}, 3, {v(vt)}")
    k(f"v_add_u32 {v(vy1)}, {2 * TSZ}, {v(vy0)}")
    G = R(8)
    for c in range(4):
        k(f"v_mul_f32 {v(G + 2 * c)}, {v(MG + c)}, {v(MC + c)}")
        k(f"v_mul_f32 {v(G + 2 * c + 1)}, {v(MG + c)}, {v(MS + c)}")
    k("s_waitcnt lgkmcnt(0)")
    k("s_barrier")
    Y = [[A[0] + 8 * j + 2 * c for c in range(4)] for j in range(4)]
    for j in range(4):
        for c in range(4):
            k(f"ds_read_b64 {v(Y[j][c], 2)}, {v(vy0 if c < 2 else vy1)} offset:{(c & 1) * TSZ + 2048 * j}")
    X = [B[0] + 2 * c for c in range(4)]
    H = [B[2] + 2 * c for c in range(4)]
    for j in range(4):
        q = QX[j]
        for e in range(2):
            lo(k, X[0] + e, q + 2 * e)
            hi(k, X[1] + e, q + 2 * e, smask)
            lo(k, X[2] + e, q + 2 * e + 1)
            hi(k, X[3] + e, q + 2 * e + 1, smask)
        for c in range(4):
            k(f"v_pk_fma_f32 {v(H[c], 2)}, {v(X[c], 2)}, {v(ST[j], 2)}, {v(ST[j] + 2, 2)}")
        for c in range(4):
            k(f"v_pk_fma_f32 {v(H[c], 2)}, {v(H[c], 2)}, {v(G + 2 * c, 2)}, {v(G + 2 * c, 2)} op_sel:[0,0,1] op_sel_hi:[1,0,1]")
        for c in range(4):
            k(f"v_pk_fma_f32 {v(H[c], 2)}, {v(H[c], 2)}, {v(Y[j][c], 2)}, {v(X[c], 2)}")
        for e in range(2):
            k(f"v_cvt_pk_bf16_f32 {v(q + 2 * e)}, {v(H[0] + e)}, {v(H[1] + e)}")
            k(f"v_cvt_pk_bf16_f32 {v(q + 2 * e + 1)}, {v(H[2] + e)}, {v(H[3] + e)}")
        k(f"buffer_store_dwordx4 {v(q, 4)}, {v(vq)}, {s(sws, 4)}, {s(sx + j)} offen")


def win_role(k, sws, smask, first):
    sw = 8
    srd(k, sw, B_WIN)
    sid, swv, sgrp, scomb, st, sone = 12, 13, 14, 15, 16, 22
    R = Regs(1)
    vl, vn, vg, vt, vb, vm, vo0, vo1 = R(), R(), R(), R(), R(), R(), R(), R()
    wave_id(k, swv, vt)
    k(f"s_sub_u32 {s(sid)}, s2, {first}")
    k(f"s_and_b32 {s(sgrp)}, {s(sid)}, 3")
    k(f"s_lshr_b32 {s(scomb)}, {s(sid)}, 2")
    k(f"s_mov_b32 {s(sone)}, 0x3f803f80")
    k(f"v_and_b32 {v(vl)}, 63, v0")
    k(f"v_and_b32 {v(vn)}, 15, v0")
    k(f"v_lshrrev_b32 {v(vg)}, 4, {v(vl)}")
    k(f"s_lshr_b32 {s(st)}, {s(scomb)}, 1")
    k(f"s_mul_i32 {s(st)}, {s(st)}, 216")
    k(f"s_and_b32 {s(st + 1)}, {s(scomb)}, 1")
    k(f"s_mul_i32 {s(st + 1)}, {s(st + 1)}, 1728")
    k(f"s_add_u32 {s(st)}, {s(st)}, {s(st + 1)}")
    k(f"s_lshl_b32 {s(st + 1)}, {s(sgrp)}, 6")
    k(f"s_add_u32 {s(st)}, {s(st)}, {s(st + 1)}")
    k(f"s_mul_i32 {s(st + 1)}, {s(swv)}, {160 * 3456}")
    k(f"s_add_u32 {s(st)}, {s(st)}, {s(st + 1)}")
    k(f"v_mul_u32_u24 {v(vb)}, {8 * 3456}, {v(vg)}")
    k(f"v_lshl_add_u32 {v(vb)}, {v(vn)}, 2, {v(vb)}")
    k(f"s_cmp_eq_u32 {s(sgrp)}, 3")
    k(f"s_cselect_b32 {s(st + 1)}, 6, 16")
    k(f"v_cmp_gt_u32 vcc, {s(st + 1)}, {v(vn)}")
    k(f"v_mov_b32 {v(vt)}, {OOB}")
    k(f"v_cndmask_b32 {v(vb)}, {v(vt)}, {v(vb)}, vcc")
    W = [R(8) for _ in range(5)]
    C1 = [R(8) for _ in range(5)]
    SB = [R(8) for _ in range(5)]
    for q in range(5):
        for i in range(8):
            k(f"buffer_load_dword {v(W[q] + i)}, {v(vb)}, {s(sw, 4)}, {s(st)} offen")
            k(f"s_add_u32 {s(st)}, {s(st)}, {3456 if i < 7 else 25 * 3456}")
    k(f"v_lshlrev_b32 {v(vm)}, 5, {v(vg)}")
    k(f"s_mul_i32 {s(st + 1)}, {s(swv)}, 640")
    k(f"s_add_u32 {s(st + 2)}, {s(st + 1)}, {MOD + 4 * 2560}")
    k(f"s_add_u32 {s(st + 1)}, {s(st + 1)}, {MOD + 3 * 2560}")
    for q in range(5):
        for h in range(2):
            k(f"buffer_load_dwordx4 {v(C1[q] + 4 * h, 4)}, {v(vm)}, {s(sws, 4)}, {s(st + 2)} offen offset:{128 * q + 16 * h}")
            k(f"buffer_load_dwordx4 {v(SB[q] + 4 * h, 4)}, {v(vm)}, {s(sws, 4)}, {s(st + 1)} offen offset:{128 * q + 16 * h}")
    k(f"v_lshlrev_b32 {v(vo0)}, 4, {v(vl)}")
    k(f"v_add_u32 {v(vo1)}, {20 * 1024}, {v(vo0)}")
    full = k.newlabel("full")
    k(f"s_cmp_lg_u32 {s(sgrp)}, 3")
    k(f"s_cbranch_scc1 {full}")
    k(f"v_lshl_add_u32 {v(vo0)}, {v(vn)}, 4, {v(vo0)}")
    k(f"v_cmp_gt_u32 vcc, 8, {v(vn)}")
    k(f"v_cndmask_b32 {v(vo0)}, {v(vt)}, {v(vo0)}, vcc")
    k(f"v_add_u32 {v(vo1)}, 16, {v(vo0)}")
    k.label(full)
    k(f"s_mul_i32 {s(st)}, {s(scomb)}, {140 * 1024}")
    k(f"s_mul_i32 {s(st + 1)}, {s(sgrp)}, {40 * 1024}")
    k(f"s_add_u32 {s(st)}, {s(st)}, {s(st + 1)}")
    k(f"s_mul_i32 {s(st + 1)}, {s(swv)}, {5 * 1024}")
    k(f"s_add_u32 {s(st)}, {s(st)}, {s(st + 1)}")
    k(f"s_add_u32 {s(st)}, {s(st)}, {WIN}")
    SUM = R(4, 4)
    for i in range(4):
        k(f"v_mov_b32 {v(SUM + i)}, 0")
    L, H = R(8), R(8)
    FE = [R(4), R(4)]
    FO = [R(4), R(4)]
    for q in range(5):
        fe, fo = FE[q & 1], FO[q & 1]
        for i in range(8):
            lo(k, L + i, W[q] + i)
            hi(k, H + i, W[q] + i, smask)
        for i in range(8):
            k(f"v_fmac_f32 {v(SUM + 2)}, {v(SB[q] + i)}, {v(L + i)}")
            k(f"v_fmac_f32 {v(SUM + 3)}, {v(SB[q] + i)}, {v(H + i)}")
        for i in range(0, 8, 2):
            k(f"v_pk_mul_f32 {v(L + i, 2)}, {v(L + i, 2)}, {v(C1[q] + i, 2)}")
            k(f"v_pk_mul_f32 {v(H + i, 2)}, {v(H + i, 2)}, {v(C1[q] + i, 2)}")
        for i in range(4):
            k(f"v_cvt_pk_bf16_f32 {v(fe + i)}, {v(L + 2 * i)}, {v(L + 2 * i + 1)}")
            k(f"v_cvt_pk_bf16_f32 {v(fo + i)}, {v(H + 2 * i)}, {v(H + 2 * i + 1)}")
        k(f"buffer_store_dwordx4 {v(fe, 4)}, {v(vo0)}, {s(sws, 4)}, {s(st)} offen")
        k(f"buffer_store_dwordx4 {v(fo, 4)}, {v(vo1)}, {s(sws, 4)}, {s(st)} offen")
        k(f"s_add_u32 {s(st)}, {s(st)}, 1024")
        for i in range(4):
            k(f"v_dot2c_f32_bf16 {v(SUM)}, {s(sone)}, {v(fe + i)}")
            k(f"v_dot2c_f32_bf16 {v(SUM + 1)}, {s(sone)}, {v(fo + i)}")
    k(f"v_lshlrev_b32 {v(vt)}, 4, v0")
    k(f"ds_write_b128 {v(vt)}, {v(SUM, 4)}")
    k("s_waitcnt lgkmcnt(0)")
    k("s_barrier")
    done = k.newlabel("win_done")
    k(f"s_cmp_lg_u32 {s(swv)}, 0")
    k(f"s_cbranch_scc1 {done}")
    k(f"v_lshlrev_b32 {v(vt)}, 2, {v(vg)}")
    k(f"v_lshl_add_u32 {v(vt)}, {v(vn)}, 4, {v(vt)}")
    for i in range(8):
        k(f"ds_read2st64_b32 {v(C1[0] + 2 * i, 2)}, {v(vt)} offset0:{2 * i} offset1:{2 * i + 1}")
    for i in range(1, 8):
        k(f"v_pk_add_f32 {v(C1[0], 2)}, {v(C1[0], 2)}, {v(C1[0] + 2 * i, 2)}")
    k(f"v_add_f32 {v(L)}, {v(C1[0])}, {v(C1[0] + 1)}")
    k(f"v_and_b32 {v(vt)}, 1, {v(vg)}")
    k(f"s_cmp_eq_u32 {s(sgrp)}, 3")
    k(f"s_cselect_b32 {s(st)}, 0, 4")
    k(f"s_cselect_b32 {s(st + 1)}, 1, 0")
    k(f"v_lshlrev_b32 {v(vt)}, {s(st)}, {v(vt)}")
    k(f"v_lshlrev_b32 {v(vn)}, {s(st + 1)}, {v(vn)}")
    k(f"v_add_u32 {v(vt)}, {v(vt)}, {v(vn)}")
    k(f"v_lshrrev_b32 {v(vg)}, 1, {v(vg)}")
    k(f"v_lshl_add_u32 {v(vt)}, {v(vg)}, 7, {v(vt)}")
    k(f"v_lshlrev_b32 {v(vt)}, 2, {v(vt)}")
    k(f"s_lshl_b32 {s(st)}, {s(scomb)}, 10")
    k(f"s_lshl_b32 {s(st + 1)}, {s(sgrp)}, 7")
    k(f"s_add_u32 {s(st)}, {s(st)}, {s(st + 1)}")
    k(f"s_add_u32 {s(st)}, {s(st)}, {CSB}")
    k(f"buffer_store_dword {v(L)}, {v(vt)}, {s(sws, 4)}, {s(st)} offen")
    k.label(done)


def wout_role(k, sws, first):
    sw = 8
    srd(k, sw, B_WOUT)
    sid, swv, sgrp, sds, st, spl, sph = 12, 13, 14, 15, 16, 22, 23
    R = Regs(1)
    vl, vn, vg, vt, vb, vb2, vo0, vo1 = R(), R(), R(), R(), R(), R(), R(), R()
    wave_id(k, swv, vt)
    k(f"s_sub_u32 {s(sid)}, s2, {first}")
    k(f"s_lshr_b32 {s(sgrp)}, {s(sid)}, 3")
    k(f"s_and_b32 {s(sds)}, {s(sid)}, 7")
    k(f"s_mov_b32 {s(spl)}, 0x05040100")
    k(f"s_mov_b32 {s(sph)}, 0x07060302")
    k(f"v_and_b32 {v(vl)}, 63, v0")
    k(f"v_and_b32 {v(vn)}, 15, v0")
    k(f"v_lshrrev_b32 {v(vg)}, 4, {v(vl)}")
    k(f"s_mul_i32 {s(st)}, {s(sds)}, 160")
    k(f"s_lshl_b32 {s(st + 1)}, {s(sgrp)}, 6")
    k(f"s_add_u32 {s(st)}, {s(st)}, {s(st + 1)}")
    k(f"s_mul_i32 {s(st + 1)}, {s(swv)}, {216 * 1280}")
    k(f"s_add_u32 {s(st)}, {s(st)}, {s(st + 1)}")
    k(f"v_mul_u32_u24 {v(vb)}, {8 * 1280}, {v(vg)}")
    k(f"v_lshl_add_u32 {v(vb)}, {v(vn)}, 2, {v(vb)}")
    k(f"v_mul_u32_u24 {v(vb2)}, {4 * 1280}, {v(vg)}")
    k(f"v_lshl_add_u32 {v(vb2)}, {v(vn)}, 2, {v(vb2)}")
    k(f"v_mov_b32 {v(vt)}, {OOB}")
    k(f"v_cmp_gt_u32 vcc, 3, {v(vg)}")
    k(f"v_cndmask_b32 {v(vb2)}, {v(vt)}, {v(vb2)}, vcc")
    k(f"v_lshlrev_b32 {v(vo0)}, 4, {v(vl)}")
    k(f"v_add_u32 {v(vo1)}, 1024, {v(vo0)}")
    full = k.newlabel("full")
    k(f"s_cmp_lg_u32 {s(sgrp)}, 2")
    k(f"s_cbranch_scc1 {full}")
    k(f"v_lshl_add_u32 {v(vo0)}, {v(vn)}, 4, {v(vo0)}")
    k(f"v_cmp_gt_u32 vcc, 8, {v(vn)}")
    k(f"v_cndmask_b32 {v(vo0)}, {v(vt)}, {v(vo0)}, vcc")
    k(f"v_cndmask_b32 {v(vb)}, {v(vt)}, {v(vb)}, vcc")
    k(f"v_cndmask_b32 {v(vb2)}, {v(vt)}, {v(vb2)}, vcc")
    k(f"v_add_u32 {v(vo1)}, 16, {v(vo0)}")
    k.label(full)
    W = [R(8) for _ in range(7)]
    so = 24
    for q in range(7):
        for i in range(8):
            if q < 6:
                row = 108 * (q // 3) + 32 * (q % 3) + i
            else:
                row = 108 * (i >> 2) + 96 + (i & 3)
            if i % 4 == 0:
                k(f"s_add_u32 {s(so)}, {s(st)}, {row * 1280}")
            k(f"buffer_load_dword {v(W[q] + i)}, {v(vb if q < 6 else vb2)}, {s(sw, 4)}, {s(so)} offen offset:{(i & 3) * 1280}")
    k(f"s_mul_i32 {s(st)}, {s(sds)}, {140 * 1024}")
    k(f"s_lshl_b32 {s(st + 1)}, {s(sgrp)}, 11")
    k(f"s_add_u32 {s(st)}, {s(st)}, {s(st + 1)}")
    k(f"s_add_u32 {s(st)}, {s(st)}, {WOUT}")
    k(f"s_mul_i32 {s(st + 1)}, {s(swv)}, {5 * 1024}")
    k(f"s_add_u32 {s(st + 2)}, {s(st)}, {s(st + 1)}")
    k(f"s_add_u32 {s(st + 2)}, {s(st + 2)}, {24 * 5 * 1024}")
    k(f"s_mul_i32 {s(st + 1)}, {s(swv)}, {30 * 1024}")
    k(f"s_add_u32 {s(st)}, {s(st)}, {s(st + 1)}")
    FE = [R(4), R(4)]
    FO = [R(4), R(4)]
    for q in range(7):
        fe, fo = FE[q & 1], FO[q & 1]
        for i in range(4):
            k(f"v_perm_b32 {v(fe + i)}, {v(W[q] + 2 * i + 1)}, {v(W[q] + 2 * i)}, {s(spl)}")
            k(f"v_perm_b32 {v(fo + i)}, {v(W[q] + 2 * i + 1)}, {v(W[q] + 2 * i)}, {s(sph)}")
        sd = st if q < 6 else st + 2
        k(f"buffer_store_dwordx4 {v(fe, 4)}, {v(vo0)}, {s(sws, 4)}, {s(sd)} offen")
        k(f"buffer_store_dwordx4 {v(fo, 4)}, {v(vo1)}, {s(sws, 4)}, {s(sd)} offen")
        if q < 5:
            k(f"s_add_u32 {s(st)}, {s(st)}, {5 * 1024}")


def build(name, stamps=False):
    k = Kernel(name)
    sws, smask = 4, 3
    end, fin = k.newlabel("end"), k.newlabel("fin")
    l1, l2 = k.newlabel("win"), k.newlabel("wout")
    k("s_cmp_ge_u32 s2, 248")
    k(f"s_cbranch_scc1 {end}")
    srd(k, sws, WS)
    k(f"s_mov_b32 {s(smask)}, 0xffff0000")
    T = Stamper(k, stamps, 1, sws, 90, 250)
    T(0)
    k("s_cmp_ge_u32 s2, 160")
    k(f"s_cbranch_scc1 {l1}")
    conv_role(k, sws, smask, T)
    k(f"s_branch {fin}")
    k.label(l1)
    k("s_cmp_ge_u32 s2, 224")
    k(f"s_cbranch_scc1 {l2}")
    win_role(k, sws, smask, 160)
    k(f"s_branch {fin}")
    k.label(l2)
    wout_role(k, sws, 224)
    k.label(fin)
    T(7)
    k.label(end)
    k("s_endpgm")
    return k, 248, 256, K1_LDS
```

```python
from common import *

XB = 0
SB2 = 81920
PARTB = SB2 + 512
S3B = PARTB + 2048
K2_LDS = S3B + 2048
C0 = -2.0 * 0.7978845608028654 * LOG2E
C1 = C0 * 0.044715
SPIN = 1 << 16


def tile_ids(k, srb, scs, st):
    k(f"s_lshr_b32 {s(st)}, s2, 5")
    k(f"s_and_b32 {s(srb)}, s2, 6")
    k(f"s_lshl_b32 {s(srb)}, {s(srb)}, 2")
    k(f"s_add_u32 {s(srb)}, {s(srb)}, {s(st)}")
    k(f"s_bfe_u32 {s(st)}, s2, 0x20003")
    k(f"s_and_b32 {s(scs)}, s2, 1")
    k(f"s_lshl_b32 {s(scs)}, {s(scs)}, 2")
    k(f"s_add_u32 {s(scs)}, {s(scs)}, {s(st)}")


def gelu_pairs(k, regs, tmp, sc, sone):
    n = len(regs)
    for i, r in enumerate(regs):
        k(f"v_pk_mul_f32 {v(tmp + 2 * i, 2)}, {v(r, 2)}, {v(r, 2)}")
    for i in range(n):
        k(f"v_pk_fma_f32 {v(tmp + 2 * i, 2)}, {v(tmp + 2 * i, 2)}, {s(sc, 2)}, {s(sc, 2)} op_sel:[0,0,1] op_sel_hi:[1,0,1]")
    for i, r in enumerate(regs):
        k(f"v_pk_mul_f32 {v(tmp + 2 * i, 2)}, {v(tmp + 2 * i, 2)}, {v(r, 2)}")
    for i in range(2 * n):
        k(f"v_exp_f32 {v(tmp + i)}, {v(tmp + i)}")
    for i in range(n):
        k(f"v_pk_add_f32 {v(tmp + 2 * i, 2)}, {v(tmp + 2 * i, 2)}, {s(sone, 2)}")
    for i in range(2 * n):
        k(f"v_rcp_f32 {v(tmp + i)}, {v(tmp + i)}")
    for i, r in enumerate(regs):
        k(f"v_pk_mul_f32 {v(r, 2)}, {v(r, 2)}, {v(tmp + 2 * i, 2)}")


def build(name, stamps=False):
    k = Kernel(name)
    sws = 4
    end = k.newlabel("end")
    k("s_cmp_ge_u32 s2, 256")
    k(f"s_cbranch_scc1 {end}")
    srd(k, sws, WS)
    T = Stamper(k, stamps, 2, sws, 90, 250)
    T(0)
    sw, srb, scs, st, sx, sm = 8, 9, 10, 11, 16, 17
    swb = 20
    sc, sone = 26, 28
    R = Regs(1)
    vl, vn, vg, vt, vt2, vxd, vw0, vw1, vx0, vx1 = [R() for _ in range(10)]
    wave_id(k, sw, vt)
    tile_ids(k, srb, scs, st)
    k(f"v_and_b32 {v(vl)}, 63, v0")
    k(f"v_bfe_u32 {v(vt)}, v0, 3, 2")
    k(f"v_bfe_u32 {v(vt2)}, v0, 5, 1")
    k(f"v_lshl_add_u32 {v(vt)}, {v(vt)}, 1, {v(vt2)}")
    k(f"v_lshlrev_b32 {v(vxd)}, 14, {v(vt)}")
    k(f"v_and_b32 {v(vt)}, 7, v0")
    k(f"v_lshl_add_u32 {v(vxd)}, {v(vt)}, 4, {v(vxd)}")
    k(f"s_lshl_b32 {s(sx)}, {s(srb)}, 9")
    k(f"s_lshl_b32 {s(st)}, {s(sw)}, 7")
    k(f"s_add_u32 {s(sx)}, {s(sx)}, {s(st)}")
    k(f"s_add_u32 {s(sx)}, {s(sx)}, {X1}")
    k(f"s_mul_i32 {s(sm)}, {s(sw)}, 20480")
    k(f"s_mov_b32 m0, {s(sm)}")
    for ks in range(20):
        k(f"buffer_load_dwordx4 {v(vxd)}, {s(sws, 4)}, {s(sx)} offen lds", tok=f"x{ks}")
        if ks < 19:
            k(f"s_add_u32 m0, m0, 1024")
            k(f"s_add_u32 {s(sx)}, {s(sx)}, 131072")
    k(f"v_lshlrev_b32 {v(vw0)}, 4, {v(vl)}")
    k(f"s_cmp_eq_u32 {s(sw)}, 3")
    k(f"s_cselect_b32 {s(st + 1)}, {OOB}, 0")
    k(f"s_or_b32 {s(st)}, {s(st + 1)}, 20480")
    k(f"v_add_u32 {v(vw1)}, {s(st)}, {v(vw0)}")
    k(f"s_mul_i32 {s(swb)}, {s(scs)}, {280 * 1024}")
    k(f"s_mul_i32 {s(st)}, {s(sw)}, {40 * 1024}")
    k(f"s_add_u32 {s(swb)}, {s(swb)}, {s(st)}")
    k(f"s_add_u32 {s(swb)}, {s(swb)}, {WIN + 140 * 1024}")
    for i in range(1, 5):
        k(f"s_add_u32 {s(swb + i)}, {s(swb)}, {4096 * i}")
    W = lambda ks, j: 8 * ks + 4 * j

    def wload(ks):
        for j in range(2):
            k(f"buffer_load_dwordx4 {a(W(ks, j), 4)}, {v(vw1 if j else vw0)}, {s(sws, 4)}, {s(swb + (ks >> 2))} offen offset:{(ks & 3) * 1024}")

    for ks in range(20):
        wload(ks)
    for i in range(5):
        k(f"s_sub_u32 {s(swb + i)}, {s(swb + i)}, {140 * 1024}")
    k(f"v_and_b32 {v(vn)}, 15, v0")
    k(f"v_lshrrev_b32 {v(vg)}, 4, {v(vl)}")
    k(f"v_lshlrev_b32 {v(vx0)}, 3, {v(vl)}")
    k(f"v_add_u32 {v(vx1)}, 40960, {v(vx0)}")
    k(f"s_mov_b32 {s(sc)}, {fbits(C1)}")
    k(f"s_mov_b32 {s(sc + 1)}, {fbits(C0)}")
    k(f"s_mov_b32 {s(sone)}, 1.0")
    k(f"s_mov_b32 {s(sone + 1)}, 1.0")
    XF = [[R(4, 4) for _ in range(4)] for _ in range(2)]
    A2 = [[R(4, 4) for _ in range(4)] for _ in range(2)]
    A1 = [[R(4, 4) for _ in range(4)] for _ in range(2)]
    ONE, AS, AO = R(4, 4), R(4, 4), R(4, 4)
    vxo = R()
    k(f"v_add_u32 {v(vxo)}, {s(sm)}, {v(vx0)}")
    for i in range(4):
        k(f"v_mov_b32 {v(ONE + i)}, 0x3f803f80")
    PF = XF[0] + XF[1]
    for ks in range(21):
        if ks < 20:
            k.wait(f"x{ks}")
            f = PF[ks % 8]
            k(f"ds_read_b64 {v(f, 2)}, {v(vxo)} offset:{ks * 1024}")
            k(f"ds_read_b64 {v(f + 2, 2)}, {v(vxo)} offset:{ks * 1024 + 512}")
        if ks >= 1:
            f = PF[(ks - 1) % 8]
            k(f"v_mfma_f32_16x16x32_bf16 {v(AS, 4)}, {v(f, 4)}, {v(f, 4)}, {v(AS, 4) if ks > 1 else 0}")
            k(f"v_mfma_f32_16x16x32_bf16 {v(AO, 4)}, {v(ONE, 4)}, {v(f, 4)}, {v(AO, 4) if ks > 1 else 0}")
    CB2 = [R(2) for _ in range(2)]
    CS1 = [R(4) for _ in range(2)]
    BS1 = [R(4) for _ in range(2)]
    k(f"s_lshl_b32 {s(st)}, {s(scs)}, 11")
    k(f"s_lshl_b32 {s(st + 2)}, {s(sw)}, 7")
    k(f"s_add_u32 {s(st)}, {s(st)}, {s(st + 2)}")
    k(f"s_add_u32 {s(st)}, {s(st)}, {CSB}")
    k(f"v_lshlrev_b32 {v(vt)}, 2, {v(vn)}")
    k(f"v_lshlrev_b32 {v(vt2)}, 4, {v(vg)}")
    for j in range(2):
        k(f"buffer_load_dword {v(CB2[j])}, {v(vt)}, {s(sws, 4)}, {s(st)} offen offset:{1024 + 64 * j}")
        k(f"buffer_load_dword {v(CB2[j] + 1)}, {v(vt)}, {s(sws, 4)}, {s(st)} offen offset:{1024 + 512 + 64 * j}")
        k(f"buffer_load_dwordx4 {v(CS1[j], 4)}, {v(vt2)}, {s(sws, 4)}, {s(st)} offen offset:{64 * j}")
        k(f"buffer_load_dwordx4 {v(BS1[j], 4)}, {v(vt2)}, {s(sws, 4)}, {s(st)} offen offset:{512 + 64 * j}")
    k(f"v_and_b32 {v(vt)}, 3, v0")
    for i in range(1, 4):
        k(f"v_cmp_eq_u32 vcc, {i}, {v(vt)}")
        k(f"v_cndmask_b32 {v(AS)}, {v(AS)}, {v(AS + i)}, vcc")
    k(f"v_mul_f32 {v(AO)}, {fbits(-1.0 / D)}, {v(AO)}")
    k(f"v_mul_f32 {v(AS)}, {fbits(1.0 / D)}, {v(AS)}")
    k(f"v_fma_f32 {v(AS)}, -{v(AO)}, {v(AO)}, {v(AS)}")
    k(f"v_max_f32 {v(AS)}, 0, {v(AS)}")
    k(f"v_add_f32 {v(AS)}, {fbits(1e-5)}, {v(AS)}")
    k(f"v_rsq_f32 {v(AS)}, {v(AS)}")
    k(f"v_lshrrev_b32 {v(vt)}, 2, {v(vn)}")
    k(f"v_cmp_eq_u32 vcc, {v(vt)}, {v(vg)}")
    k(f"s_lshl_b32 {s(st)}, {s(sw)}, 6")
    k(f"s_add_u32 {s(st)}, {s(st)}, {SB2}")
    k(f"v_lshl_add_u32 {v(vt)}, {v(vn)}, 2, {s(st)}")
    k("s_mov_b64 exec, vcc")
    k(f"ds_write2st64_b32 {v(vt)}, {v(AS)}, {v(AO)} offset0:0 offset1:1")
    k("s_mov_b64 exec, -1")
    k("s_waitcnt lgkmcnt(0)")
    k("s_barrier")
    T(1)

    def xread(ks, mt):
        f = XF[ks & 1][mt]
        base = vx1 if mt >= 2 else vx0
        o = ((mt & 1) * 20 + ks) * 1024
        k(f"ds_read_b64 {v(f, 2)}, {v(base)} offset:{o}")
        k(f"ds_read_b64 {v(f + 2, 2)}, {v(base)} offset:{o + 512}")

    def gemm_pass(acc, swap, after):
        for mt in range(4):
            xread(0, mt)
        for ks in range(20):
            for mt in range(4):
                for j in range(2):
                    x, w = v(XF[ks & 1][mt], 4), a(W(ks, j), 4)
                    p, q = (w, x) if swap else (x, w)
                    k(f"v_mfma_f32_16x16x32_bf16 {v(acc[j][mt], 4)}, {p}, {q}, {v(acc[j][mt], 4) if ks else 0}")
                if ks < 19:
                    xread(ks + 1, mt)
            if after:
                after(ks)

    gemm_pass(A2, False, wload)
    T(2)
    RS = [R(4, 4) for _ in range(4)]
    NM = [R(4, 4) for _ in range(4)]
    TM = R(32, 4)
    vs = R()
    k(f"v_lshlrev_b32 {v(vs)}, 4, {v(vg)}")
    k(f"v_add_u32 {v(vt)}, {SB2}, {v(vs)}")
    for mt in range(4):
        k(f"ds_read_b128 {v(NM[mt], 4)}, {v(vt)} offset:{256 + 64 * mt}")
        k(f"ds_read_b128 {v(RS[mt], 4)}, {v(vt)} offset:{64 * mt}")
    for mt in range(4):
        prs = [(A2[j][mt] + h, j, h) for j in range(2) for h in (0, 2)]
        for r, j, h in prs:
            k(f"v_pk_fma_f32 {v(r, 2)}, {v(NM[mt] + h, 2)}, {v(CB2[j], 2)}, {v(r, 2)} op_sel:[0,0,0] op_sel_hi:[1,0,1]")
        for r, j, h in prs:
            k(f"v_pk_fma_f32 {v(r, 2)}, {v(r, 2)}, {v(RS[mt] + h, 2)}, {v(CB2[j], 2)} op_sel:[0,0,1] op_sel_hi:[1,1,1]")
        gelu_pairs(k, [p[0] for p in prs], TM, sc, sone)
    S1 = [RS[mt] for mt in range(4)]
    S2 = [NM[mt] for mt in range(4)]
    for mt in range(4):
        for h in (0, 2):
            k(f"v_pk_add_f32 {v(S1[mt] + h, 2)}, {v(A2[0][mt] + h, 2)}, {v(A2[1][mt] + h, 2)}")
            k(f"v_pk_mul_f32 {v(S2[mt] + h, 2)}, {v(A2[0][mt] + h, 2)}, {v(A2[0][mt] + h, 2)}")
        for h in (0, 2):
            k(f"v_pk_fma_f32 {v(S2[mt] + h, 2)}, {v(A2[1][mt] + h, 2)}, {v(A2[1][mt] + h, 2)}, {v(S2[mt] + h, 2)}")
    for src, bm in ((S1, 0x3), (S2, 0xc)):
        for mt in range(4):
            for r in range(4):
                k(f"v_add_f32_dpp {v(S1[mt] + r)}, {v(src[mt] + r)}, {v(src[mt] + r)} row_ror:8 row_mask:0xf bank_mask:{bm}")
    for hi_, bm in ((0, 0x5), (2, 0xa)):
        for mt in range(2):
            for r in range(4):
                k(f"v_add_f32_dpp {v(S1[mt] + r)}, {v(S1[mt + hi_] + r)}, {v(S1[mt + hi_] + r)} row_half_mirror row_mask:0xf bank_mask:{bm}")
    for qp in ("[1,0,3,2]", "[2,3,0,1]"):
        for mt in range(2):
            for r in range(4):
                k(f"v_add_f32_dpp {v(S1[mt] + r)}, {v(S1[mt] + r)}, {v(S1[mt] + r)} quad_perm:{qp} row_mask:0xf bank_mask:0xf")
    k(f"v_bfe_u32 {v(vt)}, v0, 2, 2")
    k(f"v_lshl_add_u32 {v(vt)}, {v(vt)}, 7, {v(vs)}")
    k(f"s_lshl_b32 {s(st)}, {s(sw)}, 9")
    k(f"s_add_u32 {s(st + 2)}, {s(st)}, {PARTB}")
    k(f"v_add_u32 {v(vt)}, {s(st + 2)}, {v(vt)}")
    k(f"ds_write_b128 {v(vt)}, {v(S1[0], 4)}")
    k(f"ds_write_b128 {v(vt)}, {v(S1[1], 4)} offset:64")
    sg = 30
    k(f"s_lshl_b32 {s(sg)}, {s(srb)}, 12")
    k(f"s_add_u32 {s(sg)}, {s(sg)}, {GRAN}")
    k("s_waitcnt lgkmcnt(0)")
    k("s_barrier")
    skip = k.newlabel("nopub")
    k(f"s_cmp_lg_u32 {s(sw)}, 0")
    k(f"s_cbranch_scc1 {skip}")
    k(f"v_lshlrev_b32 {v(vt)}, 2, {v(vl)}")
    k(f"v_add_u32 {v(vt)}, {PARTB}, {v(vt)}")
    for w in range(4):
        k(f"ds_read2st64_b32 {v(TM + 2 * w, 2)}, {v(vt)} offset0:{2 * w} offset1:{2 * w + 1}")
    k(f"s_lshl_b32 {s(st + 2)}, {s(scs)}, 9")
    k(f"s_add_u32 {s(st + 2)}, {s(st + 2)}, {s(sg)}")
    k(f"v_pk_add_f32 {v(TM, 2)}, {v(TM, 2)}, {v(TM + 2, 2)}")
    k(f"v_pk_add_f32 {v(TM + 4, 2)}, {v(TM + 4, 2)}, {v(TM + 6, 2)}")
    k(f"v_pk_add_f32 {v(TM, 2)}, {v(TM, 2)}, {v(TM + 4, 2)}")
    k(f"v_and_b32 {v(TM + 1)}, 0x7fffffff, {v(TM + 1)}")
    k(f"buffer_store_dwordx2 {v(TM, 2)}, {v(vx0)}, {s(sws, 4)}, {s(st + 2)} offen sc1")
    k.label(skip)
    T(3)
    gemm_pass(A1, True, None)
    T(4)
    RN = [RS[0] + 2 * tt for tt in range(4)]
    k(f"v_lshlrev_b32 {v(vt)}, 2, {v(vn)}")
    k(f"v_add_u32 {v(vt)}, {SB2}, {v(vt)}")
    for tt in range(4):
        k(f"ds_read2_b32 {v(RN[tt], 2)}, {v(vt)} offset0:{16 * tt} offset1:{64 + 16 * tt}")
    k(f"s_lshl_b32 {s(st + 2)}, {s(srb)}, 3")
    k(f"s_add_u32 {s(st + 2)}, {s(st + 2)}, {s(scs)}")
    k(f"s_lshl_b32 {s(st + 2)}, {s(st + 2)}, 14")
    k(f"s_lshl_b32 {s(st + 3)}, {s(sw)}, 10")
    k(f"s_add_u32 {s(st + 2)}, {s(st + 2)}, {s(st + 3)}")
    k(f"s_add_u32 {s(st + 2)}, {s(st + 2)}, {Z1}")
    for tt in range(4):
        prs = [(A1[j][tt] + h, j, h) for j in range(2) for h in (0, 2)]
        for r, j, h in prs:
            k(f"v_pk_fma_f32 {v(r, 2)}, {v(CS1[j] + h, 2)}, {v(RN[tt], 2)}, {v(r, 2)} op_sel:[0,1,0] op_sel_hi:[1,1,1]")
        for r, j, h in prs:
            k(f"v_pk_fma_f32 {v(r, 2)}, {v(r, 2)}, {v(RN[tt], 2)}, {v(BS1[j] + h, 2)} op_sel:[0,0,0] op_sel_hi:[1,0,1]")
        gelu_pairs(k, [p[0] for p in prs], TM, sc, sone)
        for r in range(4):
            k(f"v_cvt_pk_bf16_f32 {v(NM[tt] + r)}, {v(A1[0][tt] + r)}, {v(A1[1][tt] + r)}")
        k(f"buffer_store_dwordx4 {v(NM[tt], 4)}, {v(vw0)}, {s(sws, 4)}, {s(st + 2)} offen")
        if tt < 3:
            k(f"s_add_u32 {s(st + 2)}, {s(st + 2)}, 4096")
    T(5)
    poll, got = k.newlabel("poll"), k.newlabel("got")
    k(f"s_mov_b32 {s(st + 2)}, {SPIN}")
    k.label(poll)
    for c in range(8):
        k(f"buffer_load_dwordx2 {v(TM + 2 * c, 2)}, {v(vx0)}, {s(sws, 4)}, {s(sg)} offen offset:{512 * c} sc1")
    k(f"v_max3_u32 {v(vt)}, {v(TM + 1)}, {v(TM + 3)}, {v(TM + 5)}")
    k(f"v_max3_u32 {v(vt)}, {v(vt)}, {v(TM + 7)}, {v(TM + 9)}")
    k(f"v_max3_u32 {v(vt)}, {v(vt)}, {v(TM + 11)}, {v(TM + 13)}")
    k(f"v_max_u32 {v(vt)}, {v(vt)}, {v(TM + 15)}")
    k(f"v_cmp_eq_u32 vcc, -1, {v(vt)}")
    k(f"s_cbranch_vccz {got}")
    k(f"s_sub_u32 {s(st + 2)}, {s(st + 2)}, 1")
    k(f"s_cmp_lg_u32 {s(st + 2)}, 0")
    k(f"s_cbranch_scc1 {poll}")
    k.label(got)
    T(6)
    for step in (2, 4, 8):
        for c in range(0, 16, 2 * step):
            k(f"v_pk_add_f32 {v(TM + c, 2)}, {v(TM + c, 2)}, {v(TM + c + step, 2)}")
    k(f"v_mul_f32 {v(TM)}, {fbits(-1.0 / FH)}, {v(TM)}")
    k(f"v_mul_f32 {v(TM + 1)}, {fbits(1.0 / FH)}, {v(TM + 1)}")
    k(f"v_fma_f32 {v(TM + 1)}, -{v(TM)}, {v(TM)}, {v(TM + 1)}")
    k(f"v_max_f32 {v(TM + 1)}, 0, {v(TM + 1)}")
    k(f"v_add_f32 {v(TM + 1)}, {fbits(1e-5)}, {v(TM + 1)}")
    k(f"v_rsq_f32 {v(TM + 1)}, {v(TM + 1)}")
    k(f"s_add_u32 {s(st + 2)}, {s(st)}, {S3B}")
    k(f"v_lshl_add_u32 {v(vt)}, {v(vl)}, 2, {s(st + 2)}")
    k(f"v_mul_f32 {v(TM)}, {v(TM)}, {v(TM + 1)}")
    k(f"ds_write2st64_b32 {v(vt)}, {v(TM + 1)}, {v(TM)} offset0:0 offset1:1")
    k(f"v_add_u32 {v(vt)}, {s(st + 2)}, {v(vs)}")
    for mt in range(4):
        k(f"ds_read_b128 {v(RS[mt], 4)}, {v(vt)} offset:{64 * mt}")
        k(f"ds_read_b128 {v(NM[mt], 4)}, {v(vt)} offset:{256 + 64 * mt}")
    k(f"s_mul_i32 {s(st + 2)}, {s(scs)}, {448 * 1024}")
    k(f"s_lshl_b32 {s(st + 3)}, {s(sw)}, 17")
    k(f"s_add_u32 {s(st + 2)}, {s(st + 2)}, {s(st + 3)}")
    k(f"s_lshl_b32 {s(st + 3)}, {s(srb)}, 11")
    k(f"s_add_u32 {s(st + 2)}, {s(st + 2)}, {s(st + 3)}")
    k(f"s_add_u32 {s(st + 2)}, {s(st + 2)}, {Z2N}")
    k(f"v_add_u32 {v(vw1)}, {65536 - 20480}, {v(vw1)}")
    for P_ in range(2):
        for j in range(2):
            for mt in (2 * P_, 2 * P_ + 1):
                for h in (0, 2):
                    r = A2[j][mt] + h
                    k(f"v_pk_fma_f32 {v(r, 2)}, {v(r, 2)}, {v(RS[mt] + h, 2)}, {v(NM[mt] + h, 2)}")
            o = TM + 8 * P_ + 4 * j
            for r in range(4):
                k(f"v_cvt_pk_bf16_f32 {v(o + r)}, {v(A2[j][2 * P_] + r)}, {v(A2[j][2 * P_ + 1] + r)}")
            k(f"buffer_store_dwordx4 {v(o, 4)}, {v(vw1 if j else vw0)}, {s(sws, 4)}, {s(st + 2)} offen offset:{1024 * P_}")
    T(7)
    k.label(end)
    k("s_endpgm")
    return k, 256, 256, K2_LDS
```

```python
from common import *
from k2 import tile_ids

K3_LDS = 128 * 1024
NZ = 32


def build(name, stamps=False):
    k = Kernel(name)
    sws, ssp, sbs, smask = 4, 8, 12, 3
    end = k.newlabel("end")
    k("s_cmp_ge_u32 s2, 256")
    k(f"s_cbranch_scc1 {end}")
    srd(k, sws, WS)
    srd(k, ssp, B_WSP)
    srd(k, sbs, B_BSP)
    T = Stamper(k, stamps, 3, sws, 90, 250)
    T(0)
    sw, srb, scs, st, slb, sz, sp, sp6 = 16, 17, 18, 19, 24, 25, 26, 27
    srow = 28
    R = Regs(1)
    vl, vt, vt2, vd0, vd1, vr0, vr1, vz, vwr, vrd, vbias = [R() for _ in range(11)]
    wave_id(k, sw, vt)
    tile_ids(k, srb, scs, st)
    k(f"s_mov_b32 {s(smask)}, 0xffff0000")
    k(f"v_and_b32 {v(vl)}, 63, v0")
    k(f"v_lshrrev_b32 {v(vt)}, 3, {v(vl)}")
    k(f"v_lshlrev_b32 {v(vd0)}, 13, {v(vt)}")
    k(f"v_lshrrev_b32 {v(vt)}, 4, {v(vl)}")
    k(f"v_and_b32 {v(vt2)}, 7, v0")
    k(f"v_xor_b32 {v(vt)}, {v(vt)}, {v(vt2)}")
    k(f"v_lshl_add_u32 {v(vd0)}, {v(vt)}, 4, {v(vd0)}")
    k(f"v_xor_b32 {v(vd1)}, 64, {v(vd0)}")
    k(f"v_add_u32 {v(vd1)}, {8 * 8192}, {v(vd1)}")
    k(f"s_lshl_b32 {s(st)}, {s(srb)}, 18")
    k(f"s_lshl_b32 {s(st + 1)}, {s(sw)}, 10")
    k(f"s_add_u32 {s(srow)}, {s(st)}, {s(st + 1)}")
    for tt in range(1, 4):
        k(f"s_add_u32 {s(srow + tt)}, {s(srow)}, {(32 * (tt >> 1) + (tt & 1)) * 4096}")
    k(f"s_lshl_b32 {s(slb)}, {s(sw)}, 15")

    def dma(u):
        tt, kp, slot = u >> 3, u & 7, u & 15
        for rh in range(2):
            k(f"s_add_u32 m0, {s(slb)}, {slot * 2048 + rh * 1024 - 128 * kp}")
            k(f"buffer_load_dwordx4 {v(vd1 if rh else vd0)}, {s(ssp, 4)}, {s(srow + tt)} offen offset:{128 * kp} lds", tok=f"w{u}")

    for u in range(16):
        dma(u)
    k(f"v_lshlrev_b32 {v(vz)}, 4, {v(vl)}")
    k(f"s_mul_i32 {s(sz)}, {s(scs)}, {448 * 1024}")
    k(f"s_lshl_b32 {s(st)}, {s(sw)}, 14")
    k(f"s_add_u32 {s(sz)}, {s(sz)}, {s(st)}")
    k(f"s_add_u32 {s(sz)}, {s(sz)}, {Z2N}")
    Z = [R(4, 4) for _ in range(NZ)]

    def zload(n):
        if n >= 112:
            return
        k(f"buffer_load_dwordx4 {v(Z[n % NZ], 4)}, {v(vz)}, {s(sws, 4)}, {s(sz)} offen offset:{(n & 3) * 1024}")
        if n & 3 == 3:
            k(f"s_add_u32 {s(sz)}, {s(sz)}, {4096 if n & 15 != 15 else 65536 - 3 * 4096}")

    NPRE = 24
    for n in range(NPRE):
        zload(n)
    k(f"v_and_b32 {v(vt)}, 15, v0")
    k(f"v_lshlrev_b32 {v(vr0)}, 7, {v(vt)}")
    k(f"v_lshlrev_b32 {v(vbias)}, 2, {v(vt)}")
    k(f"v_lshrrev_b32 {v(vt)}, 1, {v(vt)}")
    k(f"v_lshrrev_b32 {v(vt2)}, 4, {v(vl)}")
    k(f"v_xor_b32 {v(vt)}, {v(vt)}, {v(vt2)}")
    k(f"v_lshl_add_u32 {v(vr0)}, {v(vt)}, 4, {v(vr0)}")
    k(f"v_add_u32 {v(vr0)}, {s(slb)}, {v(vr0)}")
    k(f"v_xor_b32 {v(vr1)}, 64, {v(vr0)}")
    k(f"v_add_u32 {v(vwr)}, {s(slb)}, {v(vz)}")
    k(f"s_lshl_b32 {s(st)}, {s(sw)}, 10")
    k(f"v_add_u32 {v(vrd)}, {s(st)}, {v(vz)}")
    vrd2 = R()
    k(f"v_add_u32 {v(vrd2)}, 65536, {v(vrd)}")
    AW = lambda tt, ks: (tt * 16 + ks) * 4
    for u in range(32):
        tt, kp, slot = u >> 3, u & 7, u & 15
        k.wait(f"w{u}")
        k(f"ds_read_b128 {a(AW(tt, 2 * kp), 4)}, {v(vr0)} offset:{slot * 2048}")
        k(f"ds_read_b128 {a(AW(tt, 2 * kp + 1), 4)}, {v(vr1)} offset:{slot * 2048}", tok=f"r{u}")
        if 1 <= u <= 16:
            k.wait(f"r{u - 1}")
            dma(u + 15)
        if u == 16:
            for n in range(NPRE, NZ):
                zload(n)
            Z1R = [R(4, 4) for _ in range(4)]
            k(f"s_lshl_b32 {s(st)}, {s(srb)}, 3")
            k(f"s_add_u32 {s(st)}, {s(st)}, {s(scs)}")
            k(f"s_lshl_b32 {s(st)}, {s(st)}, 14")
            k(f"s_lshl_b32 {s(st + 1)}, {s(sw)}, 12")
            k(f"s_add_u32 {s(st)}, {s(st)}, {s(st + 1)}")
            k(f"s_add_u32 {s(st)}, {s(st)}, {Z1}")
            for j in range(4):
                k(f"buffer_load_dwordx4 {v(Z1R[j], 4)}, {v(vz)}, {s(sws, 4)}, {s(st)} offen offset:{1024 * j}")
            k(f"s_lshl_b32 {s(st)}, {s(srb)}, 7")
            k(f"s_lshr_b32 {s(st + 1)}, {s(sw)}, 1")
            k(f"s_lshl_b32 {s(st + 1)}, {s(st + 1)}, 6")
            k(f"s_add_u32 {s(st)}, {s(st)}, {s(st + 1)}")
            k(f"s_and_b32 {s(st + 1)}, {s(sw)}, 1")
            k(f"s_lshl_b32 {s(st + 1)}, {s(st + 1)}, 1")
            k(f"s_add_u32 {s(st)}, {s(st)}, {s(st + 1)}")
            k(f"buffer_load_ushort {v(vbias)}, {v(vbias)}, {s(sbs, 4)}, {s(st)} offen")
    k(f"s_lshl_b32 {s(st)}, {s(srb)}, 2")
    k(f"s_add_u32 {s(st)}, {s(st)}, {s(sw)}")
    k(f"s_mul_i32 {s(st)}, {s(st)}, {28 * 1024}")
    k(f"s_add_u32 {s(st)}, {s(st)}, {P}")
    k(f"s_mul_i32 {s(sp)}, {s(scs)}, 3072")
    k(f"s_add_u32 {s(sp)}, {s(sp)}, {s(st)}")
    k(f"s_lshr_b32 {s(sp6)}, {s(scs)}, 1")
    k(f"s_lshl_b32 {s(sp6)}, {s(sp6)}, 10")
    k(f"s_add_u32 {s(sp6)}, {s(sp6)}, {s(st)}")
    k(f"s_and_b32 {s(st + 1)}, {s(scs)}, 1")
    k(f"s_lshl_b32 {s(st + 1)}, {s(st + 1)}, 3")
    k(f"s_add_u32 {s(sp6)}, {s(sp6)}, {s(st + 1)}")
    k(f"s_add_u32 {s(sp6)}, {s(sp6)}, {24 * 1024}")
    T(1)
    AC = [[R(4, 4) for _ in range(4)] for _ in range(2)]
    RD = [R(4, 4) for _ in range(4)]
    G = [R(4, 4) for _ in range(2)]
    U, O = R(4, 4), R(4, 4)

    def red_steps(ft):
        b = ft & 1
        steps = []
        def w():
            for tt in range(4):
                k(f"ds_write_b128 {v(vwr)}, {v(AC[b][tt], 4)} offset:{b * 4096 + tt * 1024}")
        def bar():
            k("s_waitcnt lgkmcnt(0)")
            k("s_barrier")
            for src in range(4):
                k(f"ds_read_b128 {v(RD[src], 4)}, {v(vrd2 if src >= 2 else vrd)} offset:{(src & 1) * 32768 + b * 4096}")
        def add1():
            if ft == 0:
                lo(k, vbias, vbias)
            for r in range(4):
                k(f"v_add_f32 {v(RD[0] + r)}, {v(RD[0] + r)}, {v(RD[1] + r)}")
            for r in range(4):
                k(f"v_add_f32 {v(RD[2] + r)}, {v(RD[2] + r)}, {v(RD[3] + r)}")
        def add2():
            for r in range(4):
                k(f"v_add_f32 {v(RD[0] + r)}, {v(RD[0] + r)}, {v(vbias)}")
            for r in range(4):
                k(f"v_add_f32 {v(RD[0] + r)}, {v(RD[0] + r)}, {v(RD[2] + r)}")
        def gate():
            for r in range(4):
                (hi(k, U + r, Z1R[ft >> 1] + r, smask) if b else lo(k, U + r, Z1R[ft >> 1] + r))
            for r in range(4):
                k(f"v_mul_f32 {v(G[b] + r)}, {v(RD[0] + r)}, {v(U + r)}")
        def out():
            if ft == 6:
                k(f"v_cvt_pk_bf16_f32 {v(O)}, {v(G[0])}, {v(G[0] + 1)}")
                k(f"v_cvt_pk_bf16_f32 {v(O + 1)}, {v(G[0] + 2)}, {v(G[0] + 3)}")
                k(f"buffer_store_dwordx2 {v(O, 2)}, {v(vz)}, {s(sws, 4)}, {s(sp6)} offen")
            elif b:
                for r in range(4):
                    k(f"v_cvt_pk_bf16_f32 {v(O + r)}, {v(G[0] + r)}, {v(G[1] + r)}")
                k(f"buffer_store_dwordx4 {v(O, 4)}, {v(vz)}, {s(sws, 4)}, {s(sp)} offen offset:{1024 * (ft >> 1)}")
        return {1: w, 4: bar, 7: add1, 9: add2, 11: gate, 13: out}

    for ft in range(7):
        steps = red_steps(ft - 1) if ft else {}
        for ks in range(16):
            n = ft * 16 + ks
            for tt in range(4):
                acc = v(AC[ft & 1][tt], 4)
                k(f"v_mfma_f32_16x16x32_bf16 {acc}, {v(Z[n % NZ], 4)}, {a(AW(tt, ks), 4)}, {acc if ks else 0}")
            zload(n + NZ)
            if ks in steps:
                steps[ks]()
    T(2)
    for _, f in sorted(red_steps(6).items()):
        f()
    T(7)
    k.label(end)
    k("s_endpgm")
    return k, 256, 256, K3_LDS
```

```python
from common import *
from k2 import tile_ids

K4_LDS = 140 * 1024


def build(name, stamps=False):
    k = Kernel(name)
    sws, so, smask = 4, 8, 3
    end = k.newlabel("end")
    k("s_cmp_ge_u32 s2, 256")
    k(f"s_cbranch_scc1 {end}")
    srd(k, sws, WS)
    srd(k, so, OUT)
    T = Stamper(k, stamps, 4, sws, 90, 250)
    T(0)
    sw, srb, sds, st, swo, sp = 16, 17, 18, 19, 24, 25
    R = Regs(1)
    vl, vt, vt2, vz = [R() for _ in range(4)]
    wave_id(k, sw, vt)
    tile_ids(k, srb, sds, st)
    k(f"s_mov_b32 {s(smask)}, 0xffff0000")
    k(f"v_and_b32 {v(vl)}, 63, v0")
    k(f"v_lshlrev_b32 {v(vz)}, 4, {v(vl)}")
    k(f"s_mul_i32 {s(st)}, {s(sw)}, 5120")
    k(f"s_mov_b32 m0, {s(st)}")
    k(f"s_mul_i32 {s(swo)}, {s(sds)}, {140 * 1024}")
    k(f"s_add_u32 {s(swo)}, {s(swo)}, {s(st)}")
    k(f"s_add_u32 {s(swo)}, {s(swo)}, {WOUT}")
    k(f"s_lshl_b32 {s(sp)}, {s(srb)}, 2")
    k(f"s_add_u32 {s(sp)}, {s(sp)}, {s(sw)}")
    k(f"s_mul_i32 {s(sp)}, {s(sp)}, {28 * 1024}")
    k(f"s_add_u32 {s(sp)}, {s(sp)}, {P}")
    PF = [R(4, 4) for _ in range(28)]
    for c in range(7):
        for i in range(4):
            k(f"buffer_load_dwordx4 {v(vz)}, {s(sws, 4)}, {s(swo)} offen offset:{1024 * i} lds", tok=f"w{c}")
        k(f"s_add_u32 m0, m0, 4096")
        k(f"s_add_u32 {s(swo)}, {s(swo)}, 4096")
        k(f"buffer_load_dwordx4 {v(vz)}, {s(sws, 4)}, {s(swo)} offen lds", tok=f"w{c}")
        if c < 6:
            k(f"s_add_u32 m0, m0, {20480 - 4096}")
            k(f"s_add_u32 {s(swo)}, {s(swo)}, {20480 - 4096}")
        for i in range(4):
            k(f"buffer_load_dwordx4 {v(PF[4 * c + i], 4)}, {v(vz)}, {s(sws, 4)}, {s(sp)} offen offset:{1024 * i}")
        if c < 6:
            k(f"s_add_u32 {s(sp)}, {s(sp)}, 4096")
    vb = [vz, R(), R()]
    k(f"v_add_u32 {v(vb[1])}, {3 * 20480}, {v(vz)}")
    k(f"v_add_u32 {v(vb[2])}, {6 * 20480}, {v(vz)}")
    AC = [R(4, 4) for _ in range(5)]
    WF = [R(4, 4) for _ in range(10)]
    XR = [R(4, 4), R(4, 4), R(2)]
    GB = [R(8, 4), R(8, 4), R(4, 4)]
    vx, vx4, vgb, vo = R(), R(), R(), R()

    def wread(n):
        c = n // 20
        k(f"ds_read_b128 {v(WF[n % 10], 4)}, {v(vb[c // 3])} offset:{(c % 3) * 20480 + (n % 20) * 1024}")

    for c in range(7):
        k.wait(f"w{c}")
        k("s_barrier")
        if c == 2:
            k(f"v_and_b32 {v(vt)}, 15, v0")
            k(f"v_lshrrev_b32 {v(vt2)}, 4, {v(vl)}")
            k(f"v_lshlrev_b32 {v(vx4)}, 3, {v(vt)}")
            k(f"v_lshl_add_u32 {v(vx)}, {v(vt2)}, 15, {v(vx4)}")
            k(f"v_lshl_add_u32 {v(vx4)}, {v(vt2)}, 14, {v(vx4)}")
            k(f"v_lshlrev_b32 {v(vgb)}, 5, {v(vt2)}")
            k(f"v_mul_u32_u24 {v(vo)}, 2560, {v(vt)}")
            k(f"s_mul_i32 {s(st)}, {s(sds)}, {20 * 16384}")
            k(f"s_lshl_b32 {s(st + 1)}, {s(srb)}, 9")
            k(f"s_add_u32 {s(st)}, {s(st)}, {s(st + 1)}")
            k(f"s_lshl_b32 {s(st + 1)}, {s(sw)}, 7")
            k(f"s_add_u32 {s(st)}, {s(st)}, {s(st + 1)}")
            k(f"s_add_u32 {s(st)}, {s(st)}, {X1}")
            for j in range(2):
                for h in range(2):
                    k(f"s_add_u32 {s(st + 1)}, {s(st)}, {(8 * j + h) * 16384}")
                    k(f"buffer_load_dwordx2 {v(XR[j] + 2 * h, 2)}, {v(vx)}, {s(sws, 4)}, {s(st + 1)} offen")
            k(f"s_add_u32 {s(st + 1)}, {s(st)}, {16 * 16384}")
            k(f"buffer_load_dwordx2 {v(XR[2], 2)}, {v(vx4)}, {s(sws, 4)}, {s(st + 1)} offen")
            k(f"s_mul_i32 {s(st)}, {s(sds)}, 320")
            k(f"s_add_u32 {s(st)}, {s(st)}, {MOD + 5 * 2560}")
            for j in range(2):
                for h in range(2):
                    k(f"buffer_load_dwordx4 {v(GB[j] + 4 * h, 4)}, {v(vgb)}, {s(sws, 4)}, {s(st)} offen offset:{128 * j + 16 * h}")
            k(f"v_lshlrev_b32 {v(vgb)}, 4, {v(vt2)}")
            k(f"buffer_load_dwordx4 {v(GB[2], 4)}, {v(vgb)}, {s(sws, 4)}, {s(st)} offen offset:256")
        for i in range(8):
            wread(20 * c + i)
        for i in range(20):
            n = 20 * c + i
            ks, dt = n // 5, n % 5
            k(f"v_mfma_f32_16x16x32_bf16 {v(AC[dt], 4)}, {v(WF[n % 10], 4)}, {v(PF[ks], 4)}, {v(AC[dt], 4) if ks else 0}")
            if i + 8 < 20:
                wread(n + 8)
    T(2)
    k(f"s_lshl_b32 {s(st)}, {s(srb)}, 6")
    k(f"s_lshr_b32 {s(st + 1)}, {s(sw)}, 1")
    k(f"s_lshl_b32 {s(st + 1)}, {s(st + 1)}, 5")
    k(f"s_add_u32 {s(st)}, {s(st)}, {s(st + 1)}")
    k(f"s_and_b32 {s(st + 1)}, {s(sw)}, 1")
    k(f"s_add_u32 {s(st)}, {s(st)}, {s(st + 1)}")
    k(f"s_mul_i32 {s(st)}, {s(st)}, 1280")
    k(f"s_mul_i32 {s(st + 1)}, {s(sds)}, 160")
    k(f"s_add_u32 {s(st)}, {s(st)}, {s(st + 1)}")
    k(f"v_lshl_add_u32 {v(vt)}, {v(vt2)}, 3, {v(vo)}")
    k(f"v_lshl_add_u32 {v(vo)}, {v(vt2)}, 4, {v(vo)}")
    E, O_ = WF[0], WF[1]
    for j in range(2):
        for r in range(4):
            lo(k, E + r, XR[j] + r)
            hi(k, O_ + r, XR[j] + r, smask)
        for r in range(4):
            k(f"v_fmac_f32 {v(E + r)}, {v(GB[j] + 2 * r)}, {v(AC[2 * j] + r)}")
            k(f"v_fmac_f32 {v(O_ + r)}, {v(GB[j] + 2 * r + 1)}, {v(AC[2 * j + 1] + r)}")
        for r in range(4):
            k(f"v_cvt_pk_bf16_f32 {v(XR[j] + r)}, {v(E + r)}, {v(O_ + r)}")
        k(f"buffer_store_dwordx4 {v(XR[j], 4)}, {v(vo)}, {s(so, 4)}, {s(st)} offen offset:{64 * j}")
    for h in range(2):
        lo(k, E + 2 * h, XR[2] + h)
        hi(k, E + 2 * h + 1, XR[2] + h, smask)
    for r in range(4):
        k(f"v_fmac_f32 {v(E + r)}, {v(GB[2] + r)}, {v(AC[4] + r)}")
    for h in range(2):
        k(f"v_cvt_pk_bf16_f32 {v(XR[2] + h)}, {v(E + 2 * h)}, {v(E + 2 * h + 1)}")
    k(f"buffer_store_dwordx2 {v(XR[2], 2)}, {v(vt)}, {s(so, 4)}, {s(st)} offen offset:128")
    T(7)
    k.label(end)
    k("s_endpgm")
    return k, 256, 256, K4_LDS
```

```python
S, D, F, FH = 2048, 640, 1728, 864

MOD = 0x000000
STAT1 = 0x004000
CSB = 0x008000
GRAN = 0x010000
UT = 0x100000
QT = 0x380000
X1 = 0x600000
WIN = 0x880000
WOUT = 0xAB0000
Z2N = 0xC00000
Z1 = 0xF80000
P = 0x1380000
TS = 0x1800000
WS_USED = 0x2000000

A_Q, A_K, A_V, A_SHIFT, A_SSMK, A_SSMD, B_X, B_WIN, B_WSP, B_BSP, B_WOUT, C_, W_MOD, OUT, DBG, WS = \
    [8 * i for i in range(16)]
SIZES = {A_Q: S * D * 2, A_K: S * D * 2, A_V: S * D * 2, A_SHIFT: D * 8, A_SSMK: D * S * 2, A_SSMD: D * 2,
         B_WIN: D * F * 2, B_WSP: S * S * 2, B_BSP: S * 2, B_WOUT: FH * D * 2, C_: D * 2, W_MOD: D * 3840 * 2,
         OUT: S * D * 2, DBG: 256, WS: WS_USED}


def pi_of(t):
    return 32 * (t >> 5) + 16 * (t & 1) + ((t & 31) >> 1)
```

```python
import sys, os
sys.path.insert(0, os.path.dirname(os.path.abspath(__file__)))
from common import *
import gen, k0, k1, k2, k3, k4

NAME = gen.NAME + "_kernel"

def barrier(k, ph):
    k("s_mov_b64 exec, -1")
    k("s_waitcnt vmcnt(0) lgkmcnt(0)")
    k("s_barrier")
    srd(k, 8, DBG)
    skip, poll, got = k.newlabel("bskip"), k.newlabel("bpoll"), k.newlabel("bgot")
    wave_id(k, 12, 1)
    k("s_cmp_lg_u32 s12, 0")
    k(f"s_cbranch_scc1 {skip}")
    k("buffer_wbl2 sc1")
    k("s_waitcnt vmcnt(0)")
    k("s_mov_b64 exec, 1")
    k("v_mov_b32 v1, 1")
    k(f"buffer_atomic_add v1, off, s[8:11], 0 offset:{ph * 32} sc1")
    k("s_mov_b32 s13, 100000")
    k.label(poll)
    k("s_sleep 2")
    k(f"buffer_load_dword v2, off, s[8:11], 0 offset:{ph * 32} sc1")
    k("v_readfirstlane_b32 s14, v2")
    k("s_cmp_ge_u32 s14, 256")
    k(f"s_cbranch_scc1 {got}")
    k("s_sub_u32 s13, s13, 1")
    k("s_cmp_lg_u32 s13, 0")
    k(f"s_cbranch_scc1 {poll}")
    k.label(got)
    k("s_mov_b64 exec, -1")
    k("buffer_inv sc1")
    k("s_waitcnt vmcnt(0)")
    k.label(skip)
    k("s_barrier")

def build(stamps, aslist):
    k = Kernel(NAME)
    k("s_cmp_ge_u32 s2, 256")
    k("s_cbranch_scc1 L_mega_end")
    lds = 0
    for ph, m in enumerate((k0, k1, k2, k3, k4)):
        sub, _, _, l = m.build(f"p{ph}_kernel", stamps)
        lds = max(lds, l)
        assert sub.items[-1].mn == "s_endpgm"
        k.items += sub.items[:-1]
        if ph < 4:
            barrier(k, ph)
    k.label("L_mega_end")
    k("s_endpgm")
    body = k.finish()
    k.hi["v"] = 255
    launch = (f"; @launch kernel={NAME} grid=(256,1,1) block=(256,1,1) lds={lds}" if aslist
              else f"; @launch grid=(256,1,1) block=(256,1,1) lds={lds}")
    out = gen.header() + [launch, '.amdgcn_target "amdgcn-amd-amdhsa--gfx950"', ".text",
                          f".globl {NAME}\n.p2align 8\n.type {NAME},@function\n{NAME}:\n{body}",
                          '.section .rodata,"a"', ".p2align 6\n" + k.descriptor()]
    return "\n".join(out) + "\n"

open("../x_mega_single.s", "w").write(build(False, False))
open("../x_mega_list.s", "w").write(build(False, True))
open("../t_mega.s", "w").write(build(True, True))
```
